```python
import torch

def _softmax(x, axis=-1):
    return torch.softmax(x, dim=axis)
def _gelu(x):
    return torch.nn.functional.gelu(x, approximate="tanh")
def _silu(x):
    return torch.nn.functional.silu(x)
def _sigmoid(x):
    return torch.sigmoid(x)
def _layernorm(x, axis=-1, eps=1e-5):
    m = x.mean(dim=axis, keepdim=True)
    v = x.var(dim=axis, keepdim=True, unbiased=False)
    return (x - m) / torch.sqrt(v + eps)
def _scatter_add(tgt, idx, src, axis=0):
    return tgt.clone().index_add_(axis, idx, src)
def _segment_sum(src, seg, n):
    out = torch.zeros((n,) + src.shape[1:], dtype=src.dtype)
    return out.index_add_(0, seg, src)
def _pad(x, pw):
    flat = tuple(v for pair in reversed(pw) for v in pair)
    return torch.nn.functional.pad(x, flat)

kernel_name = 'gated_mix__ssm_conv_s4d__dense_activation_squared_relu__prompt'

def setup_inputs():

    _w = (lambda a: (lambda t: t.to(torch.bfloat16) if t.is_floating_point() else t)(torch.as_tensor(a)))
    def _A_setup():
        Bsz, L, D, N = 1, 2048, 512, 128
        return {
            "u": _w((lambda *s: torch.randn(*s, dtype=torch.bfloat16) * 0.05)(Bsz, L, D)),
            "log_A_real": _w((lambda *s: torch.randn(*s, dtype=torch.bfloat16) * 6.4)(D, N) * 0.5),
            "A_imag": _w((lambda *s: torch.randn(*s, dtype=torch.bfloat16) * 0.1)(D, N) * 3.14),
            "C_real": _w((lambda *s: torch.randn(*s, dtype=torch.bfloat16) * 0.4)(D, N) / N ** 0.5),
            "C_imag": _w((lambda *s: torch.randn(*s, dtype=torch.bfloat16) * 0.4)(D, N) / N ** 0.5),
            "log_dt": _w((lambda *s: torch.randn(*s, dtype=torch.bfloat16) * 0.1)(D) * 0.5 - 4.0),
            "D_skip": _w((lambda *s: torch.randn(*s, dtype=torch.bfloat16) * 0.1)(D)),
        }
    _A_in = _A_setup()

    def _B_setup():
        B, S, D, F = 1, 2048, 512, 1792
        return {
            "x": _w((lambda *s: torch.randn(*s, dtype=torch.bfloat16) * 0.05)(B, S, D)),
            "w1": _w((lambda *s: torch.randn(*s, dtype=torch.bfloat16) * 0.05)(D, F)),
            "b1": _w((lambda *s: torch.randn(*s, dtype=torch.bfloat16) * 0.05)(F)),
            "w2": _w((lambda *s: torch.randn(*s, dtype=torch.bfloat16) * 0.05)(F, D)),
            "b2": _w((lambda *s: torch.randn(*s, dtype=torch.bfloat16) * 0.05)(D)),
        }
    _B_in = _B_setup()

    return {
        "A_u": _A_in["u"],
        "A_log_A_real": _A_in["log_A_real"],
        "A_A_imag": _A_in["A_imag"],
        "A_C_real": _A_in["C_real"],
        "A_C_imag": _A_in["C_imag"],
        "A_log_dt": _A_in["log_dt"],
        "A_D_skip": _A_in["D_skip"],
        "B_x": _B_in["x"],
        "B_w1": _B_in["w1"],
        "B_b1": _B_in["b1"],
        "B_w2": _B_in["w2"],
        "B_b2": _B_in["b2"],
        "gate_w": _w((lambda *s: torch.randn(*s, dtype=torch.bfloat16) * 0.05)(512) * 16.0),
    }

def reference(A_u, A_log_A_real, A_A_imag, A_C_real, A_C_imag, A_log_dt, A_D_skip, B_x, B_w1, B_b1, B_w2, B_b2, gate_w):
    def _A_ref(u, log_A_real, A_imag, C_real, C_imag, log_dt, D_skip):
        L = u.shape[1]
        dt = torch.exp(log_dt)
        A = -torch.exp(log_A_real) + 1j * A_imag
        C = (C_real + 1j * C_imag) * dt[:, None]
        pos = (lambda x, dt: x.to(dt))(torch.arange(L), log_dt.dtype)
        P = torch.exp((A * dt[:, None])[:, :, None] * pos[None, None, :])
        K = 2.0 * torch.einsum("dn,dnl->dl", C, P).real
        L2 = 2 * L
        u_t = (lambda x, *d: x.permute(*d))(u, 0, 2, 1)
        Kf = (lambda x, *a, **k: torch.fft.rfft(x.float(), *a, **k))(K, L2)
        Uf = (lambda x, *a, **k: torch.fft.rfft(x.float(), *a, **k))(u_t, L2)
        y = (lambda x, *a, **k: torch.fft.irfft(x, *a, **k).to(torch.bfloat16))(Uf * Kf[None, :, :], L2)[:, :, :L]
        y = (lambda x, *d: x.permute(*d))(y, 0, 2, 1)
        return y + u * D_skip[None, None, :]

    def _B_ref(x, w1, b1, w2, b2):
        h = torch.einsum("bsd,df->bsf", x, w1) + b1
        zero = torch.zeros_like(h)
        r = torch.where(h > zero, h, zero)
        h = r * r
        out = torch.einsum("bsf,fd->bsd", h, w2) + b2
        return out

    x = A_u
    g = _sigmoid((x * gate_w).sum(-1, keepdims=True))
    a = _A_ref(x, A_log_A_real, A_A_imag, A_C_real, A_C_imag, A_log_dt, A_D_skip)
    b = _B_ref(x, B_w1, B_b1, B_w2, B_b2)
    return g * a + (1 - g) * b
```

```python
NAME = "gated_mix__ssm_conv_s4d__dense_activation_squared_relu__prompt"
class Asm:
    def __init__(self):
        self.lines = []; self.kernels = []; self.launches = []; self.lab = 0
    def __call__(self, s):
        for l in s.strip("\n").split("\n"):
            self.lines.append("    " + l.strip() if not l.strip().endswith(":") else l.strip())
    def label(self, p="L"):
        self.lab += 1; return f"{p}_{self.lab}"
    def begin(self, name):
        self.lines += [f".globl {name}", ".p2align 8", f".type {name},@function", f"{name}:"]
    def end(self, name, vgpr, sgpr=96, accum=None, agpr=0):
        acc = accum if accum is not None else (vgpr + 3) // 4 * 4
        nfv = acc + agpr if agpr else vgpr
        self.kernels.append((name, nfv, sgpr, acc))
    def launch(self, name, grid, block, lds):
        self.launches.append(f"; @launch kernel={name} grid=({grid},1,1) block=({block},1,1) lds={lds}")
    def text(self, header=""):
        o = [header.rstrip("\n")] if header else []
        o += self.launches
        o += ['.amdgcn_target "amdgcn-amd-amdhsa--gfx950"', ".text"] + self.lines
        o += ['.section .rodata,"a"']
        for name, nfv, sgpr, acc in self.kernels:
            o += [".p2align 6", f".amdhsa_kernel {name}", f"  .amdhsa_next_free_vgpr {nfv}", f"  .amdhsa_next_free_sgpr {sgpr}",
                  f"  .amdhsa_accum_offset {acc}", "  .amdhsa_group_segment_fixed_size 0", "  .amdhsa_kernarg_size 128",
                  "  .amdhsa_user_sgpr_count 2", "  .amdhsa_user_sgpr_kernarg_segment_ptr 1", "  .amdhsa_system_sgpr_workgroup_id_x 1",
                  "  .amdhsa_float_denorm_mode_32 3", ".end_amdhsa_kernel"]
        return "\n".join(o) + "\n"
    def srd(self, d, base, nbytes, off=0):
        if off:
            self(f"s_add_u32 s{d}, s{base}, {off}\ns_addc_u32 s{d+1}, s{base+1}, 0")
        else:
            self(f"s_mov_b32 s{d}, s{base}\ns_mov_b32 s{d+1}, s{base+1}")
        self(f"s_mov_b32 s{d+2}, {nbytes}\ns_mov_b32 s{d+3}, 0x00020000")
```

```python
import sys
from asmlib import *

WS_XT = 0; WS_AT = 2 << 20; WS_G = 4 << 20; WS_H = 8 << 20; WS_TS = 64 << 20
H_BYTES = 64 * 112 * 1024
P = lambda i: 36 + 2 * i
P_X, P_LA, P_AI, P_CR, P_CI, P_LDT, P_DS, P_BX, P_W1, P_B1, P_W2, P_B2, P_GW, P_OUT, P_DBG, P_WS = [P(i) for i in range(16)]
LOG2E = 0x3fb8aa3b; LOG2E_LO = 0x32a57060; LN2 = 0x3f317218; INV2PI = 0x3e22f983

def vr(a, n): return f"v[{a}:{a+n-1}]"

def load_ptrs(A):
    A("s_load_dwordx16 s[36:51], s[0:1], 0\ns_load_dwordx16 s[52:67], s[0:1], 64")

def wave_id(A, sdst, vtmp):
    A(f"v_lshrrev_b32 v{vtmp}, 6, v0\ns_nop 0\nv_readfirstlane_b32 s{sdst}, v{vtmp}\ns_nop 3")

def ts_begin(A, cfg):
    if cfg.get("ts"): A("s_memrealtime s[92:93]")
def ts_end(A, cfg, group, sidx):
    if not cfg.get("ts"): return
    L = A.label("ts")
    A(f"s_waitcnt vmcnt(0)\ns_barrier\ns_memrealtime s[94:95]\ns_waitcnt lgkmcnt(0)")
    A.srd(4, P_WS, 1 << 20, WS_TS + group * 8192)
    A(f"v_mov_b32 v4, s92\nv_mov_b32 v5, s93\nv_mov_b32 v6, s94\nv_mov_b32 v7, s95\ns_lshl_b32 s68, s{sidx}, 4\nv_mov_b32 v1, 0")
    A(f"v_cmp_eq_u32 vcc, 0, v0\ns_and_saveexec_b64 s[70:71], vcc\ns_cbranch_execz {L}\nbuffer_store_dwordx4 v[4:7], v1, s[4:7], s68 offen\n{L}:\ns_mov_b64 exec, -1")

def role_g1(A, cfg, sMT, sNT):
    st = cfg.get("hstore", "")
    sW, sROT, sXB, sWB, sT, sM0 = 70, 71, 72, 73, 74, 75
    A.srd(4, P_X, 2048 * 1024); A.srd(8, P_W1, 512 * 3584); A.srd(12, P_B1, 3584); A.srd(16, P_WS, H_BYTES, WS_H)
    wave_id(A, sW, 1)
    vL, vX, vWv, vA, vB, vT = 1, 2, 6, 10, 14, 22
    FR = 32; ACC = 64; BI = 128
    A(f"v_and_b32 v{vL}, 63, v0")
    A(f"s_and_b32 s{sT}, s{sW}, 1\ns_lshl_b32 s{sT}, s{sT}, 7\ns_lshl_b32 s{sM0}, s{sNT}, 8\ns_add_u32 s{sT}, s{sT}, s{sM0}")
    A(f"v_lshrrev_b32 v{vT}, 5, v{vL}\nv_lshlrev_b32 v{vT}, 3, v{vT}")
    for ft in range(2):
        for q in range(4):
            A(f"buffer_load_dwordx2 {vr(BI + 8*ft + 2*q, 2)}, v{vT}, s[12:15], s{sT} offen offset:{64*ft + 16*q}")
    A(f"v_lshrrev_b32 v{vT}, 3, v{vL}\nv_lshrrev_b32 v{vT+1}, 4, v{vL}\nv_and_b32 v{vT+2}, 7, v{vL}")
    A(f"s_lshl_b32 s{sT}, s{sW}, 15")
    A(f"v_lshl_add_u32 v{vT}, v{vT}, 10, s{sT}")
    for jj in range(4):
        A(f"v_add_u32 v{vT+3}, {4*(jj&1)}, v{vT+1}\nv_xor_b32 v{vT+3}, v{vT+2}, v{vT+3}\nv_lshl_add_u32 v{vX+jj}, v{vT+3}, 4, v{vT}")
        if jj: A(f"v_add_u32 v{vX+jj}, {jj*(8192-1024)}, v{vX+jj}")
    A(f"s_mul_i32 s{sT}, s{sW}, {16*3584}\nv_mul_u32_u24 v{vT}, 3584, v{vT+1}\nv_add_u32 v{vT}, s{sT}, v{vT}")
    A(f"v_and_b32 v{vT+2}, 15, v{vL}\nv_lshlrev_b32 v{vT+3}, 2, v{vT+1}\nv_xor_b32 v{vT+2}, v{vT+2}, v{vT+3}\nv_lshl_add_u32 v{vWv}, v{vT+2}, 4, v{vT}")
    for jj in range(1, 4):
        A(f"v_add_u32 v{vWv+jj}, {jj*(4*3584-1024)}, v{vWv}")
    A(f"s_add_u32 s{sROT}, s{sMT}, s{sNT}\ns_lshl_b32 s{sXB}, s{sMT}, 17\ns_lshl_b32 s{sWB}, s{sNT}, 8\ns_lshl_b32 s{sM0}, s{sW}, 12")
    def issue(item):
        s, isw = item >> 1, item & 1
        A(f"s_add_u32 s{sT}, s{sROT}, {s}\ns_and_b32 s{sT}, s{sT}, 7")
        if isw: A(f"s_mul_i32 s{sT}, s{sT}, {64*3584}\ns_add_u32 s{sT}, s{sT}, s{sWB}")
        else: A(f"s_lshl_b32 s{sT}, s{sT}, 7\ns_add_u32 s{sT}, s{sT}, s{sXB}")
        A(f"s_add_u32 m0, s{sM0}, {(item % 5) * 16384}\ns_nop 0")
        for jj in range(4):
            A(f"buffer_load_dwordx4 v{(vWv if isw else vX)+jj}, s[{'8:11' if isw else '4:7'}], s{sT} offen offset:{jj*1024} lds")
    for it in range(5): issue(it)
    A(f"v_bfe_u32 v{vT}, v{vL}, 2, 2")
    A(f"v_lshrrev_b32 v{vT+1}, 5, v{vL}")
    A(f"v_lshl_add_u32 v{vT+2}, v{vT+1}, 3, v{vT}\nv_lshlrev_b32 v{vT+2}, 8, v{vT+2}")
    A(f"v_and_b32 v{vT+3}, 1, v{vL}\nv_lshl_add_u32 v{vT+2}, v{vT+3}, 3, v{vT+2}")
    A(f"v_bfe_u32 v{vT+3}, v{vL}, 4, 1\nv_bfe_u32 v{vT+4}, v{vL}, 1, 1\nv_lshl_add_u32 v{vT+3}, v{vT+3}, 1, v{vT+4}")
    A(f"s_and_b32 s{sT}, s{sW}, 1\ns_lshl_b32 s{sT}, s{sT}, 3\nv_add_u32 v{vT+3}, s{sT}, v{vT+3}")
    A(f"v_lshlrev_b32 v{vT+4}, 2, v{vT}\nv_xor_b32 v{vT+3}, v{vT+3}, v{vT+4}")
    A(f"v_lshl_add_u32 v{vA}, v{vT+3}, 4, v{vT+2}\nv_xor_b32 v{vA+1}, 64, v{vA}")
    A(f"v_add_u32 v{vA+2}, 0x8000, v{vA}\nv_add_u32 v{vA+3}, 0x8000, v{vA+1}")
    A(f"s_lshr_b32 s{sT}, s{sW}, 1\ns_lshl_b32 s{sT}, s{sT}, 13\nv_and_b32 v{vT}, 31, v{vL}\nv_lshl_add_u32 v{vT+2}, v{vT}, 7, s{sT}")
    A(f"v_bfe_u32 v{vT+3}, v{vL}, 1, 3\nv_xor_b32 v{vT+3}, v{vT+3}, v{vT+1}\nv_lshl_add_u32 v{vB}, v{vT+3}, 4, v{vT+2}")
    for ks in range(1, 4): A(f"v_xor_b32 v{vB+ks}, {ks*32}, v{vB}")
    for ks in range(4): A(f"v_add_u32 v{vB+4+ks}, 0x8000, v{vB+ks}")
    A("s_waitcnt vmcnt(20)")
    for ft in range(2):
        for q in range(4):
            for d in range(2):
                src = BI + 8*ft + 2*q + d
                for lt in range(2):
                    a = ACC + 16*(2*ft + lt) + 4*q + 2*d
                    A(f"v_lshlrev_b32 v{a}, 16, v{src}\nv_and_b32 v{a+1}, 0xffff0000, v{src}")
    def reads(s, ks, buf):
        xs, wsl = (2*s) % 5, (2*s+1) % 5
        o = []
        fb = FR + 16*buf
        for ft in range(2):
            hi = wsl >= 2; base = (wsl - (2 if hi else 0)) * 16384
            for z in range(2):
                o.append(f"ds_read_b64_tr_b16 {vr(fb + 4*ft + 2*z, 2)}, v{vA + ft + (2 if hi else 0)} offset:{base + 4096*ks + 1024*z}")
        for lt in range(2):
            hi = xs >= 2; base = (xs - (2 if hi else 0)) * 16384
            o.append(f"ds_read_b128 {vr(fb + 8 + 4*lt, 4)}, v{vB + ks + (4 if hi else 0)} offset:{base + 4096*lt}")
        return [o[0], o[1], o[4], o[2], o[3], o[5]]
    def mfma(buf, i):
        ft, lt = [(0,0),(1,0),(0,1),(1,1)][i]
        fb = FR + 16*buf; a = ACC + 16*(2*ft+lt)
        return f"v_mfma_f32_32x32x16_bf16 {vr(a,16)}, {vr(fb+4*ft,4)}, {vr(fb+8+4*lt,4)}, {vr(a,16)}"
    A("s_waitcnt vmcnt(12)\ns_barrier")
    for r in reads(0, 0, 0): A(r)
    for s in range(8):
        for ks in range(4):
            buf = ks & 1
            A("s_waitcnt lgkmcnt(0)")
            nxt = None
            if ks < 3: nxt = reads(s, ks+1, buf ^ 1)
            elif s < 7:
                A(f"s_waitcnt vmcnt({4 if 2*s+4 <= 15 else 0})\ns_barrier")
                nxt = reads(s+1, 0, buf ^ 1)
            A(mfma(buf, 0))
            if nxt: [A(r) for r in nxt[:3]]
            A(mfma(buf, 1))
            if nxt: [A(r) for r in nxt[3:]]
            A(mfma(buf, 2))
            if ks == 3 and 2*s+5 <= 15: issue(2*s+5)
            A(mfma(buf, 3))
            if ks == 3 and 2*s+6 <= 15: issue(2*s+6)
    A(f"s_lshl_b32 s{sT}, s{sMT}, 2\ns_and_b32 s{sM0}, s{sW}, 2\ns_add_u32 s{sT}, s{sT}, s{sM0}\ns_mul_i32 s{sT}, s{sT}, 112")
    A(f"s_lshl_b32 s{sM0}, s{sNT}, 3\ns_add_u32 s{sT}, s{sT}, s{sM0}\ns_and_b32 s{sM0}, s{sW}, 1\ns_lshl_b32 s{sM0}, s{sM0}, 2\ns_add_u32 s{sT}, s{sT}, s{sM0}\ns_lshl_b32 s{sT}, s{sT}, 10")
    A(f"s_add_u32 s{sM0}, s{sT}, {112*1024}\nv_lshlrev_b32 v{vT}, 4, v{vL}\ns_nop 7")
    for i, (ft, lt) in enumerate([(0,0),(1,0),(0,1),(1,1)]):
        a = ACC + 16*(2*ft+lt); o = FR + 8*i
        for r in range(16):
            A(f"v_max_f32 v{BI + r}, 0, v{a+r}")
        for r in range(16):
            A(f"v_mul_f32 v{BI + r}, v{BI + r}, v{BI + r}")
        for r in range(8):
            A(f"v_cvt_pk_bf16_f32 v{o + r}, v{BI + 2*r}, v{BI + 2*r + 1}")
        for hb in range(2):
            A(f"buffer_store_dwordx4 {vr(o + 4*hb, 4)}, v{vT}, s[16:19], s{sM0 if lt else sT} offen offset:{(2*ft+hb)*1024} {st}")
    return 144

def role_g2(A, cfg, sM2, sN2):
    D = cfg.get("g2depth", 4); NS = D + 1
    ld = cfg.get("hload", "")
    sW, sROT, sHB, sWB, sT, sM0, sFB, sT2 = 70, 71, 72, 73, 74, 75, 76, 77
    A.srd(4, P_WS, H_BYTES, WS_H); A.srd(8, P_W2, 1792 * 1024); A.srd(12, P_WS, 2 << 20, WS_AT); A.srd(16, P_WS, 16384, WS_G)
    A.srd(20, P_B2, 1024); A.srd(24, P_OUT, 2048 * 1024)
    wave_id(A, sW, 1)
    vL, vH, vWv, vA, vT = 1, 2, 4, 6, 8
    AF = 16; ACC = 32; HB = 96
    EP = HB + 8 * NS
    A(f"v_and_b32 v{vL}, 63, v0")
    A(f"s_and_b32 s{sT}, s{sW}, 1\ns_mul_i32 s{sT}, s{sT}, {112*1024}\nv_lshl_add_u32 v{vH}, v{vL}, 4, s{sT}\ns_sub_u32 s{sT}, {112*1024}, s{sT}\nv_lshl_add_u32 v{vH+1}, v{vL}, 4, s{sT}")
    A(f"v_lshrrev_b32 v{vT}, 3, v{vL}\nv_lshlrev_b32 v{vT}, 10, v{vT}\nv_bfe_u32 v{vT+1}, v{vL}, 4, 1\nv_lshlrev_b32 v{vT+1}, 2, v{vT+1}\nv_and_b32 v{vT+2}, 7, v{vL}\nv_xor_b32 v{vT+1}, v{vT+1}, v{vT+2}")
    A(f"v_lshl_add_u32 v{vWv}, v{vT+1}, 4, v{vT}\nv_add_u32 v{vWv+1}, 7168, v{vWv}")
    A(f"s_mul_i32 s{sHB}, s{sM2}, {2*112*1024}\ns_mul_i32 s{sT}, s{sW}, {28*1024}\ns_add_u32 s{sHB}, s{sHB}, s{sT}")
    A(f"s_lshl_b32 s{sWB}, s{sN2}, 7\ns_mul_i32 s{sT}, s{sW}, {28*16384}\ns_add_u32 s{sWB}, s{sWB}, s{sT}")
    A(f"s_mul_i32 s{sM0}, s{sW}, {NS*2048}")
    A(f"s_mul_i32 s{sFB}, s{sM2}, 7\ns_lshr_b32 s{sFB}, s{sFB}, 3\ns_mul_i32 s{sT}, s{sN2}, 7\ns_lshr_b32 s{sT}, s{sT}, 1\ns_add_u32 s{sFB}, s{sFB}, s{sT}\ns_cmp_ge_u32 s{sFB}, 28\ns_cselect_b32 s{sT}, 28, 0\ns_sub_u32 s{sFB}, s{sFB}, s{sT}")
    def issue(s):
        sl = s % NS
        A(f"s_lshl_b32 s{sT}, s{sFB}, 14\ns_add_u32 s{sT}, s{sT}, s{sWB}\ns_add_u32 m0, s{sM0}, {sl*2048}\ns_lshl_b32 s{sT2}, s{sFB}, 10\ns_add_u32 s{sT2}, s{sT2}, s{sHB}")
        A(f"buffer_load_dwordx4 v{vWv}, s[8:11], s{sT} offen lds\nbuffer_load_dwordx4 v{vWv+1}, s[8:11], s{sT} offen offset:1024 lds")
        for lt in range(2):
            A(f"buffer_load_dwordx4 {vr(HB + 8*sl + 4*lt, 4)}, v{vH+lt}, s[4:7], s{sT2} offen {ld}")
        A(f"s_add_u32 s{sFB}, s{sFB}, 1\ns_cmp_eq_u32 s{sFB}, 28\ns_cselect_b32 s{sFB}, 0, s{sFB}")
    for s in range(D): issue(s)
    A(f"v_bfe_u32 v{vT}, v{vL}, 2, 2\nv_lshrrev_b32 v{vT+1}, 5, v{vL}\nv_lshl_add_u32 v{vT+2}, v{vT+1}, 2, v{vT}\nv_lshlrev_b32 v{vT+2}, 7, v{vT+2}")
    A(f"v_and_b32 v{vT+3}, 1, v{vL}\nv_lshl_add_u32 v{vT+2}, v{vT+3}, 3, v{vT+2}\nv_add_u32 v{vT+2}, s{sM0}, v{vT+2}")
    A(f"v_bfe_u32 v{vT+3}, v{vL}, 4, 1\nv_bfe_u32 v{vT+4}, v{vL}, 1, 1\nv_lshl_add_u32 v{vT+3}, v{vT+3}, 1, v{vT+4}")
    A(f"v_bfe_u32 v{vT+4}, v{vL}, 3, 1\ns_lshr_b32 s{sT}, s{sW}, 1\nv_xor_b32 v{vT+4}, s{sT}, v{vT+4}\nv_lshl_add_u32 v{vT+3}, v{vT+4}, 2, v{vT+3}")
    A(f"v_lshl_add_u32 v{vA}, v{vT+3}, 4, v{vT+2}\nv_xor_b32 v{vA+1}, 64, v{vA}")
    for r in range(64): A(f"v_mov_b32 v{ACC+r}, 0")
    def reads(s):
        sl = s % NS; fb = AF + 8 * (s & 1)
        return [f"ds_read_b64_tr_b16 {vr(fb + 4*dt + 2*z, 2)}, v{vA+dt} offset:{sl*2048 + 1024*z}" for dt in range(2) for z in range(2)]
    def mfma(s, i):
        dt, lt = [(0,0),(0,1),(1,0),(1,1)][i]
        a = ACC + 16*(2*dt+lt)
        return f"v_mfma_f32_32x32x16_bf16 {vr(a,16)}, {vr(AF + 8*(s&1) + 4*dt,4)}, {vr(HB + 8*(s%NS) + 4*lt,4)}, {vr(a,16)}"
    A(f"s_waitcnt vmcnt({4*(D-1)})")
    for r in reads(0): A(r)
    NEP = 16 + 4 + 1
    def ep_loads():
        if "wait_at" in cfg: cfg["wait_at"](A)
        A(f"s_lshl_b32 s{sT}, s{sN2}, 6\ns_lshr_b32 s{sT2}, s{sW}, 1\ns_lshl_b32 s{sT2}, s{sT2}, 5\ns_add_u32 s78, s{sT}, s{sT2}")
        A(f"s_lshl_b32 s{sT}, s{sM2}, 6\ns_and_b32 s{sT2}, s{sW}, 1\ns_lshl_b32 s{sT2}, s{sT2}, 5\ns_add_u32 s79, s{sT}, s{sT2}")
        A(f"v_and_b32 v{vT}, 31, v{vL}\nv_lshrrev_b32 v{vT+1}, 5, v{vL}")
        A(f"v_lshlrev_b32 v{vT+2}, 14, v{vT+1}\nv_lshl_add_u32 v{vT+2}, v{vT}, 1, v{vT+2}")
        A(f"s_lshl_b32 s{sT}, s78, 12\ns_lshl_b32 s{sT2}, s79, 1\ns_add_u32 s{sT}, s{sT}, s{sT2}")
        for r in range(16): A(f"v_mov_b32 v{EP+r}, 0")
        for r in range(16):
            dd = 8*(r >> 2) + (r & 3)
            A(f"s_add_u32 s{sT2}, s{sT}, {dd*4096}\nbuffer_load_short_d16_hi v{EP+r}, v{vT+2}, s[12:15], s{sT2} offen {cfg.get('aload','')}")
        A(f"v_lshlrev_b32 v{vT+3}, 3, v{vT+1}\ns_lshl_b32 s{sT}, s78, 1")
        for q in range(4): A(f"buffer_load_dwordx2 {vr(EP+16+2*q,2)}, v{vT+3}, s[20:23], s{sT} offen offset:{16*q}")
        A(f"v_lshlrev_b32 v{vT+3}, 3, v{vT}\ns_lshl_b32 s{sT}, s79, 3\nbuffer_load_dwordx2 {vr(EP+24,2)}, v{vT+3}, s[16:19], s{sT} offen {cfg.get('aload','')}")
    for s in range(28):
        if s + D < 28:
            issue(s + D); A(f"s_waitcnt vmcnt({4*(D-1)}) lgkmcnt(0)")
        else:
            rem = max(0, 27 - (s + 1))
            if s + D == 28: ep_loads()
            A(f"s_waitcnt vmcnt({4*rem + NEP}) lgkmcnt(0)")
        A(mfma(s, 0))
        if s < 27: [A(r) for r in reads(s+1)]
        A(mfma(s, 1)); A(mfma(s, 2)); A(mfma(s, 3))
    A("s_barrier")
    A(f"v_lshlrev_b32 v{vT+4}, 4, v{vL}")
    for a in range(1, 4):
        A(f"s_xor_b32 s{sT}, s{sW}, {a}\ns_mul_i32 s{sT}, s{sT}, {3*4096}\nv_add_u32 v{vT+4+a}, s{sT}, v{vT+4}")
    A(f"s_mul_i32 s{sT}, s{sW}, {3*4096}\nv_add_u32 v{vT+4}, s{sT}, v{vT+4}\ns_nop 7")
    for a in range(1, 4):
        for q in range(4):
            A(f"ds_write_b128 v{vT+4+a}, {vr(ACC+16*a+4*q,4)} offset:{(a-1)*4096 + q*1024}")
    A("s_waitcnt lgkmcnt(0)\ns_barrier")
    for a in range(1, 4):
        for q in range(4):
            A(f"ds_read_b128 {vr(ACC+16*a+4*q,4)}, v{vT+4} offset:{(a-1)*4096 + q*1024}")
    for a in range(1, 4):
        A(f"s_waitcnt lgkmcnt({4*(3-a)})")
        for r in range(16): A(f"v_add_f32 v{ACC+r}, v{ACC+r}, v{ACC+16*a+r}")
    A("s_waitcnt vmcnt(0)")
    T = ACC + 16
    def rnd(dst, src, n):
        for r in range(0, n, 2): A(f"v_cvt_pk_bf16_f32 v{T+32+r//2}, v{src+r}, v{src+r+1}")
        for r in range(0, n, 2): A(f"v_lshlrev_b32 v{dst+r}, 16, v{T+32+r//2}\nv_and_b32 v{dst+r+1}, 0xffff0000, v{T+32+r//2}")
    rnd(ACC, ACC, 16)
    for r in range(0, 16, 2):
        A(f"v_lshlrev_b32 v{T+r}, 16, v{EP+16+r//2}\nv_and_b32 v{T+r+1}, 0xffff0000, v{EP+16+r//2}")
    for r in range(16): A(f"v_add_f32 v{ACC+r}, v{ACC+r}, v{T+r}")
    rnd(ACC, ACC, 16)
    for r in range(16): A(f"v_mul_f32 v{ACC+r}, v{ACC+r}, v{EP+25}\nv_mul_f32 v{EP+r}, v{EP+r}, v{EP+24}")
    rnd(ACC, ACC, 16); rnd(EP, EP, 16)
    for r in range(16): A(f"v_add_f32 v{ACC+r}, v{ACC+r}, v{EP+r}")
    for r in range(0, 16, 2): A(f"v_cvt_pk_bf16_f32 v{T+r//2}, v{ACC+r}, v{ACC+r+1}")
    A(f"v_lshlrev_b32 v{vT+2}, 10, v{vT}\nv_lshl_add_u32 v{vT+2}, v{vT+1}, 4, v{vT+2}\ns_lshl_b32 s{sT}, s79, 10\ns_lshl_b32 s{sT2}, s78, 1\ns_add_u32 s{sT}, s{sT}, s{sT2}")
    for p in range(2):
        A(f"v_permlane32_swap_b32 v{T+4*p}, v{T+4*p+2}\nv_permlane32_swap_b32 v{T+4*p+1}, v{T+4*p+3}")
    A("s_nop 1")
    for p in range(2):
        A(f"buffer_store_dwordx4 {vr(T+4*p,4)}, v{vT+2}, s[24:27], s{sT} offen offset:{32*p}")
    return EP + 26

TAB_PITCH = 528; TAB_CH = 57 * TAB_PITCH
SP_BASE = 60416; SP_CH = 4128
CP_PITCH = 4160; CP_CH = 8 * CP_PITCH
U_BASE = 68672; U_CH = 4576
SSM_LDS = 81920

def exp_to(A, dst, src, t0, t1, sL2E, sL2ELO, sLN2):
    A(f"v_mul_f32 v{t0}, s{sL2E}, v{src}\nv_fma_f32 v{t1}, v{src}, s{sL2E}, -v{t0}\nv_fma_f32 v{t1}, v{src}, s{sL2ELO}, v{t1}")
    A(f"v_exp_f32 v{dst}, v{t0}\nv_mul_f32 v{t1}, s{sLN2}, v{t1}\nv_fma_f32 v{dst}, v{dst}, v{t1}, v{dst}")

def role_t_issue(A, cfg, sT64, sDG, sGR, sW):
    A.srd(4, P_X, 2048 * 1024); A.srd(8, P_GW, 1024)
    A(f"v_lshrrev_b32 v2, 3, v1\nv_lshlrev_b32 v2, 10, v2\nv_and_b32 v3, 7, v1\nv_lshl_add_u32 v2, v3, 4, v2\nv_add_u32 v3, 7168, v2")
    A(f"s_lshl_b32 s72, s{sT64}, 16\ns_lshl_b32 s73, s{sDG}, 7\ns_add_u32 s72, s72, s73\ns_lshl_b32 s73, s{sW}, 14\ns_add_u32 s72, s72, s73")
    A(f"s_lshl_b32 s73, s{sW}, 11\ns_add_u32 m0, s73, {SP_BASE}\ns_nop 0")
    A(f"buffer_load_dwordx4 v2, s[4:7], s72 offen lds\nbuffer_load_dwordx4 v3, s[4:7], s72 offen offset:1024 lds")
    A(f"v_lshlrev_b32 v4, 5, v0\ns_lshl_b32 s72, s{sGR}, 13\nv_and_b32 v5, 0x3ff, v4")
    A(f"buffer_load_dwordx4 v[8:11], v4, s[4:7], s72 offen\nbuffer_load_dwordx4 v[12:15], v4, s[4:7], s72 offen offset:16")
    A(f"buffer_load_dwordx4 v[16:19], v5, s[8:11], 0 offen\nbuffer_load_dwordx4 v[20:23], v5, s[8:11], 0 offen offset:16")
    return 6

def role_t_finish(A, cfg, sT64, sDG, sGR, sW, younger):
    st = cfg.get("xtstore", "")
    A.srd(4, P_WS, 2 << 20, WS_XT); A.srd(8, P_WS, 16384, WS_G)
    A(f"v_lshrrev_b32 v2, 4, v1\nv_bfe_u32 v3, v1, 2, 2\nv_lshl_add_u32 v3, v2, 3, v3\nv_lshlrev_b32 v3, 7, v3\nv_and_b32 v4, 3, v1\nv_lshl_add_u32 v3, v4, 3, v3")
    A(f"s_lshl_b32 s72, s{sW}, 5\ns_add_u32 s72, s72, {SP_BASE}\nv_add_u32 v3, s72, v3")
    A(f"v_and_b32 v4, 15, v1\nv_lshlrev_b32 v4, 12, v4\nv_lshl_add_u32 v4, v2, 4, v4")
    A(f"s_lshl_b32 s72, s{sDG}, 18\ns_lshl_b32 s73, s{sW}, 16\ns_add_u32 s72, s72, s73\ns_lshl_b32 s73, s{sT64}, 7\ns_add_u32 s72, s72, s73")
    A(f"s_waitcnt vmcnt({younger + 4})\ns_barrier")
    for i in range(2):
        for z in range(2):
            A(f"ds_read_b64_tr_b16 {vr(24 + 4*i + 2*z, 2)}, v3 offset:{4096*i + 512*z}")
    A("s_waitcnt lgkmcnt(0)")
    for i in range(2):
        A(f"buffer_store_dwordx4 {vr(24+4*i,4)}, v4, s[4:7], s72 offen offset:{64*i} {st}")
    A(f"s_waitcnt vmcnt({younger + 2})")
    for j in range(8):
        A(f"v_lshlrev_b32 v32, 16, v{8+j}\nv_and_b32 v33, 0xffff0000, v{8+j}\nv_lshlrev_b32 v34, 16, v{16+j}\nv_and_b32 v35, 0xffff0000, v{16+j}")
        A(f"v_mul_f32 v32, v32, v34\nv_mul_f32 v33, v33, v35\nv_cvt_pk_bf16_f32 v34, v32, v33\nv_lshlrev_b32 v32, 16, v34\nv_and_b32 v33, 0xffff0000, v34")
        if j == 0: A("v_add_f32 v36, v32, v33")
        else: A("v_add_f32 v36, v36, v32\nv_add_f32 v36, v36, v33")
    for m in (1, 2, 4, 8, 16):
        A(f"ds_swizzle_b32 v32, v36 offset:{(m << 10) | 0x1f}\ns_waitcnt lgkmcnt(0)\nv_add_f32 v36, v36, v32")
    A(f"v_cvt_pk_bf16_f32 v36, v36, v36\nv_and_b32 v36, 0xffff0000, v36\nv_sub_f32 v36, 0, v36")
    A(f"s_mov_b32 s74, {LOG2E}\ns_mov_b32 s75, {LOG2E_LO}\ns_mov_b32 s76, {LN2}")
    exp_to(A, 32, 36, 33, 34, 74, 75, 76)
    A("v_add_f32 v32, 1.0, v32\nv_rcp_f32 v33, v32\ns_nop 0\nv_fma_f32 v34, -v32, v33, 1.0\nv_fma_f32 v34, v34, v33, v33")
    A("v_cmp_class_f32 vcc, v34, 3\ns_nop 1\nv_cndmask_b32 v34, v34, v33, vcc")
    A("v_cvt_pk_bf16_f32 v34, v34, v34\nv_and_b32 v34, 0xffff0000, v34\nv_sub_f32 v35, 1.0, v34\nv_cvt_pk_bf16_f32 v35, v35, v35\nv_and_b32 v35, 0xffff0000, v35")
    L = A.label("gst")
    A(f"v_lshrrev_b32 v32, 5, v0\nv_lshlrev_b32 v32, 3, v32\ns_lshl_b32 s72, s{sGR}, 6\nv_and_b32 v33, 31, v0\nv_cmp_eq_u32 vcc, 0, v33\ns_and_saveexec_b64 s[74:75], vcc")
    A(f"buffer_store_dwordx2 v[34:35], v32, s[8:11], s72 offen {st}\ns_mov_b64 exec, s[74:75]")

def role_k_issue(A, cfg, sCP, sW):
    A.srd(12, P_LA, 131072); A.srd(16, P_AI, 131072); A.srd(20, P_CR, 131072); A.srd(24, P_CI, 131072)
    A.srd(28, P_LDT, 1024); A.srd(32, P_DS, 1024)
    A(f"v_lshlrev_b32 v6, 1, v0\ns_lshl_b32 s72, s{sCP}, 9")
    for i in range(4): A(f"buffer_load_ushort v{40+i}, v6, s[{12+4*i}:{15+4*i}], s72 offen")
    A(f"v_lshrrev_b32 v7, 7, v0\nv_lshlrev_b32 v7, 1, v7\ns_lshl_b32 s72, s{sCP}, 2")
    A(f"buffer_load_ushort v44, v7, s[28:31], s72 offen\nbuffer_load_ushort v45, v7, s[32:35], s72 offen")
    return 6

def role_u_issue(A, cfg, sCP, sW):
    A.srd(4, P_WS, 2 << 20, WS_XT)
    A(f"v_lshlrev_b32 v6, 5, v0\ns_lshl_b32 s72, s{sCP}, 13")
    A(f"buffer_load_dwordx4 v[48:51], v6, s[4:7], s72 offen {cfg.get('xtload','')}\nbuffer_load_dwordx4 v[52:55], v6, s[4:7], s72 offen offset:16 {cfg.get('xtload','')}")

def role_k_pre(A, cfg, sW):
    A("v_lshlrev_b32 v72, 3, v0\nv_sub_u32 v72, 2040, v72\nv_cvt_f32_u32 v72, v72")
    for d in range(0, 8, 2):
        A(f"v_add_f32 v73, {float(d)}, v72" if d in (2, 4) else (f"v_mov_b32 v73, v72" if d == 0 else f"v_add_f32 v73, 0x40c00000, v72"))
        A(f"v_add_f32 v74, 1.0, v73\nv_cvt_pk_bf16_f32 v75, v73, v74\nv_lshlrev_b32 v73, 16, v75\nv_and_b32 v74, 0xffff0000, v75\nv_cvt_u32_f32 v73, v73\nv_cvt_u32_f32 v74, v74")
        A(f"v_lshlrev_b32 v{56+d}, 1, v73\nv_lshlrev_b32 v{57+d}, 1, v74")
    A("v_and_b32 v72, 15, v1\nv_lshlrev_b32 v72, 3, v72\nv_lshrrev_b32 v73, 4, v1")
    A(f"s_lshr_b32 s72, s{sW}, 1\ns_mul_i32 s72, s72, {SP_CH}\ns_add_u32 s72, s72, {SP_BASE}")
    for r in range(4):
        A(f"v_lshl_add_u32 v74, v73, 9, v72\nv_add_u32 v74, {1024 + 128*r}, v74\nv_min_u32 v74, 2049, v74\nv_lshl_add_u32 v{68+r}, v74, 1, s72")
    A("v_lshrrev_b32 v74, 1, v73\nv_lshlrev_b32 v74, 7, v74\nv_and_b32 v75, 1, v73\nv_lshl_add_u32 v74, v75, 2, v74")
    A("v_lshlrev_b32 v75, 7, v73\nv_add_u32 v75, 256, v75\nv_lshlrev_b32 v76, 8, v73\nv_cmp_gt_u32 vcc, 2, v73\nv_mov_b32 v77, 4\nv_mov_b32 v78, 128")
    A("v_cndmask_b32 v75, v76, v75, vcc\nv_cndmask_b32 v76, v77, 2, vcc\nv_cndmask_b32 v77, v78, v77, vcc")
    A(f"s_and_b32 s73, s{sW}, 1\ns_cmp_eq_u32 s73, 0\ns_cselect_b64 vcc, -1, 0\ns_nop 1")
    A("v_cndmask_b32 v74, v75, v74, vcc\nv_cndmask_b32 v76, v76, 1, vcc\nv_cndmask_b32 v77, v77, 2, vcc\nv_add_u32 v74, v74, v72")
    A("v_lshl_add_u32 v64, v74, 1, s72\nv_lshl_add_u32 v65, v76, 1, v64\nv_lshl_add_u32 v66, v77, 1, v64\nv_lshl_add_u32 v67, v76, 1, v66")
    A("v_mov_b32 v76, 0\nv_mov_b32 v77, 0\nv_mov_b32 v78, 0\nv_mov_b32 v79, 0")
    A(f"v_lshlrev_b32 v72, 4, v0\nv_cmp_gt_u32 vcc, 30, v0\ns_and_saveexec_b64 s[74:75], vcc")
    A(f"v_add_u32 v72, {U_BASE}, v72\nds_write_b128 v72, v[76:79]\nds_write_b128 v72, v[76:79] offset:{U_CH}\ns_mov_b64 exec, s[74:75]")

def role_k_tables(A, cfg, sW, younger):
    A(f"s_mov_b32 s74, {LOG2E}\ns_mov_b32 s75, {LOG2E_LO}\ns_mov_b32 s76, {LN2}\ns_mov_b32 s77, {INV2PI}")
    A(f"s_lshr_b32 s72, s{sW}, 1\ns_mul_i32 s72, s72, {TAB_CH}\nv_and_b32 v7, 127, v0\nv_lshl_add_u32 v7, v7, 2, s72")
    A(f"s_waitcnt vmcnt({younger})")
    for i in range(6): A(f"v_lshlrev_b32 v{40+i}, 16, v{40+i}")
    exp_to(A, 80, 44, 82, 83, 74, 75, 76)
    exp_to(A, 81, 40, 84, 85, 74, 75, 76)
    A("v_cvt_pk_bf16_f32 v82, v80, v81\nv_lshlrev_b32 v80, 16, v82\nv_and_b32 v81, 0xffff0000, v82")
    A("v_mul_f32 v81, v81, v80\nv_mul_f32 v41, v41, v80\nv_add_f32 v80, v80, v80")
    A("v_mul_f32 v81, s74, v81\nv_mul_f32 v41, s77, v41")
    G, V, W1, W8, W128, W2, W4, Tm = 84, 86, 88, 90, 92, 94, 96, 98
    A(f"v_mul_f32 v{G}, v42, v80\nv_mul_f32 v{G+1}, v43, v80")
    for (W, p, conj) in ((W1, "1.0", 0), (W8, "0x41000000", 1), (W128, "0x43000000", 0)):
        A(f"v_mul_f32 v{Tm}, {p}, v81\nv_mul_f32 v{Tm+1}, {p}, v41\nv_exp_f32 v{Tm}, -v{Tm}\nv_fract_f32 v{Tm+1}, v{Tm+1}")
        A(f"v_cos_f32 v{W}, v{Tm+1}\nv_sin_f32 v{W+1}, v{Tm+1}\ns_nop 0\nv_mul_f32 v{W}, v{W}, v{Tm}")
        A(f"v_mul_f32 v{W+1}, {'-' if conj else ''}v{W+1}, v{Tm}")
    tmp = [Tm + 2]
    def cm(d, a, b):
        t = tmp[0]; tmp[0] = Tm + 2 + ((tmp[0] - Tm - 2 + 2) % 8)
        return [f"v_mul_f32 v{t}, v{a+1}, v{b+1}", f"v_mul_f32 v{t+1}, v{a+1}, v{b}", f"v_fma_f32 v{d+1}, v{a}, v{b+1}, v{t+1}", f"v_fma_f32 v{d}, v{a}, v{b}, -v{t}"]
    pk = [Tm + 10]
    def put(row, a):
        t = pk[0]; pk[0] = Tm + 10 + ((pk[0] - Tm - 10 + 1) % 6)
        return [f"v_cvt_pk_bf16_f32 v{t}, v{a}, v{a+1}", f"ds_write_b32 v7, v{t} offset:{row*TAB_PITCH}"]
    X = Tm + 16
    s1 = ["v_mov_b32 v%d, 0x3f80" % (Tm + 18), f"ds_write_b32 v7, v{Tm+18} offset:{41*TAB_PITCH}"] + put(42, W8)
    s1 += cm(W2, W1, W1) + cm(W4, W2, W2) + cm(V, W8, W8) + put(43, V)
    for b in range(3, 16): s1 += cm(V, V, W8) + put(41 + b, V)
    s2 = []
    for a in range(17):
        if a: s2 += cm(G, G, W128)
        if a < 2:
            s2 += put(8*a, G) + cm(X, G, W1) + put(8*a+1, X)
            for c in range(2, 8): s2 += cm(X, X, W1) + put(8*a+c, X)
        elif a < 4:
            s2 += put(16 + 4*(a-2), G) + cm(X, G, W2) + put(16 + 4*(a-2) + 1, X)
            for c in range(2, 4): s2 += cm(X, X, W2) + put(16 + 4*(a-2) + c, X)
        elif a < 8:
            s2 += put(24 + 2*(a-4), G) + cm(X, G, W4) + put(24 + 2*(a-4) + 1, X)
        else:
            s2 += put(32 + (a-8), G)
    for l in s1 + s2: A(l)

def role_k_mfma(A, cfg, sW):
    A(f"s_lshr_b32 s72, s{sW}, 1\ns_mul_i32 s72, s72, {TAB_CH}\ns_and_b32 s73, s{sW}, 1\ns_mul_i32 s73, s73, {16*TAB_PITCH}")
    A(f"v_and_b32 v72, 15, v1\nv_mul_u32_u24 v72, {TAB_PITCH}, v72\nv_lshrrev_b32 v73, 4, v1\nv_lshl_add_u32 v72, v73, 4, v72\nv_add_u32 v72, s72, v72\nv_add_u32 v73, s73, v72")
    for r in range(8): A(f"v_mov_b32 v{80+r}, 0")
    A("s_waitcnt lgkmcnt(0)\ns_barrier")
    F = 88
    for ks in range(8):
        f = F + 12*ks
        A(f"ds_read_b128 {vr(f,4)}, v73 offset:{64*ks}\nds_read_b128 {vr(f+4,4)}, v72 offset:{32*TAB_PITCH + 64*ks}\nds_read_b128 {vr(f+8,4)}, v72 offset:{41*TAB_PITCH + 64*ks}")
        if ks == 3: pass
    for ks in range(8):
        f = F + 12*ks
        A(f"s_waitcnt lgkmcnt({min(15, 3*(7-ks))})")
        A(f"v_mfma_f32_16x16x32_bf16 v[80:83], {vr(f,4)}, {vr(f+8,4)}, v[80:83]\nv_mfma_f32_16x16x32_bf16 v[84:87], {vr(f+4,4)}, {vr(f+8,4)}, v[84:87]")
    A("s_nop 7")
    for r in range(0, 8, 2): A(f"v_cvt_pk_bf16_f32 v{88+r//2}, v{80+r}, v{81+r}")
    for r in range(8):
        A(f"ds_write_b16{'_d16_hi' if r & 1 else ''} v{64+r}, v{88+r//2}")

def role_k_expand(A, cfg, sW):
    A("v_lshlrev_b32 v72, 4, v0\nv_mov_b32 v76, 0\nv_mov_b32 v77, 0\nv_mov_b32 v78, 0\nv_mov_b32 v79, 0")
    A("s_waitcnt lgkmcnt(0)\ns_barrier")
    O = [80, 112]
    for ch in range(2):
        for j in range(4):
            A(f"ds_read_u16 v{O[ch]+j}, v{56 + 7 - 2*j} offset:{SP_BASE + ch*SP_CH}\nds_read_u16 v{O[ch]+8+j}, v{56 + 6 - 2*j} offset:{SP_BASE + ch*SP_CH}")
    A(f"v_cmp_eq_u32 vcc, 0, v0\ns_and_saveexec_b64 s[74:75], vcc\nds_write_b128 v72, v[76:79] offset:4096\nds_write_b128 v72, v[76:79] offset:{CP_CH + 4096}\ns_mov_b64 exec, s[74:75]")
    A("s_waitcnt lgkmcnt(0)")
    for ch in range(2):
        for j in range(4): A(f"v_lshl_or_b32 v{O[ch]+j}, v{O[ch]+8+j}, 16, v{O[ch]+j}")
        A(f"ds_write_b128 v72, {vr(O[ch],4)} offset:{ch*CP_CH}")
    A("s_waitcnt lgkmcnt(0)\ns_barrier")
    for ch in range(2): A(f"ds_read_b128 {vr(O[ch]+4,4)}, v72 offset:{ch*CP_CH + 16}")
    A(f"v_mul_u32_u24 v73, {CP_PITCH}, v0\nv_cmp_gt_u32 vcc, 16, v0\ns_and_saveexec_b64 s[74:75], vcc\nds_write_b128 v73, v[76:79] offset:4096\ns_mov_b64 exec, s[74:75]")
    A(f"v_add_u32 v73, {CP_CH}, v72")
    for ch in range(2):
        o = O[ch]; o2 = o + 8; e = o + 14; e2 = o + 22
        A("s_waitcnt lgkmcnt(0)" if ch == 0 else "")
        for j in range(6): A(f"v_mov_b32 v{o2+j}, v{o+1+j}")
        for j in range(7): A(f"v_alignbit_b32 v{e+j}, v{o+j+1}, v{o+j}, 16")
        for j in range(6): A(f"v_alignbit_b32 v{e2+j}, v{o+j+2}, v{o+j+1}, 16")
        ad = 72 if ch == 0 else 73
        src = {5: o2, 3: o + 2, 1: o2 + 2, 6: e, 4: e2, 2: e + 2, 0: e2 + 2}
        for s in (6, 5, 4, 3, 2, 1, 0):
            A(f"ds_write_b128 v{ad}, {vr(src[s],4)} offset:{(7-s)*CP_PITCH}")

def role_u_store(A, cfg, younger):
    A(f"v_lshrrev_b32 v74, 7, v0\nv_mul_u32_u24 v74, {U_CH}, v74\nv_and_b32 v75, 127, v0\nv_lshl_add_u32 v74, v75, 5, v74\nv_add_u32 v74, {U_BASE + 480}, v74")
    A(f"s_waitcnt vmcnt({younger})\nds_write_b128 v74, v[48:51]\nds_write_b128 v74, v[52:55] offset:16")

def role_conv(A, cfg, sCP, sW):
    st = cfg.get("atstore", "")
    ACC = 48; AF = 80; BF = 144
    A.srd(4, P_WS, 2 << 20, WS_AT)
    A(f"s_lshr_b32 s72, s{sW}, 1\ns_and_b32 s73, s{sW}, 1\ns_lshl_b32 s73, s73, 8")
    A(f"s_mul_i32 s74, s72, {CP_CH}\ns_sub_u32 s74, s74, s73\ns_add_u32 s74, s74, {7*CP_PITCH + 2*2024 - 64*59}")
    A(f"v_and_b32 v2, 7, v1\nv_mul_u32_u24 v2, {CP_PITCH}, v2\nv_sub_u32 v2, s74, v2\nv_lshrrev_b32 v3, 4, v1\nv_bfe_u32 v4, v1, 3, 1\nv_sub_u32 v4, v3, v4\nv_lshl_add_u32 v2, v4, 4, v2")
    A(f"s_mul_i32 s74, s72, {U_CH}\ns_sub_u32 s75, s74, s73\ns_add_u32 s75, s75, {U_BASE + 2*(224 - 96)}")
    A(f"v_and_b32 v4, 15, v1\nv_lshlrev_b32 v5, 5, v4\nv_lshl_add_u32 v5, v3, 4, v5\nv_add_u32 v5, s75, v5")
    A("s_waitcnt lgkmcnt(0)\ns_barrier")
    for r in range(32): A(f"v_mov_b32 v{ACC+r}, 0")
    def rd(ee):
        b = ee & 1; o = []
        for i in range(8):
            o.append(f"ds_read_b128 {vr(BF + 32*b + 4*i, 4)}, v5 offset:{512*i + 64*(3-ee)}")
            o.append(f"ds_read_b128 {vr(AF + 32*b + 4*(7-i), 4)}, v2 offset:{64*(59 - (ee + 8*(7-i)))}")
        return o
    for l in rd(0): A(l)
    for ee in range(4):
        b = ee & 1
        nxt = rd(ee+1) if ee < 3 else []
        ms = []
        for r in range(7, -1, -1):
            for q in range(r, 8):
                ms.append((r, q))
        if ee == 0:
            done = -1
            for (r, q) in ms:
                need = 7 - r
                if need > done:
                    A(f"s_waitcnt lgkmcnt({min(15, 16 - 2*(need+1))})"); done = need
                    if need == 7:
                        for l in nxt: A(l)
                A(f"v_mfma_f32_16x16x32_bf16 {vr(ACC+4*q,4)}, {vr(AF+32*b+4*r,4)}, {vr(BF+32*b+4*(q-r),4)}, {vr(ACC+4*q,4)}")
        else:
            A("s_waitcnt lgkmcnt(0)")
            for i, (r, q) in enumerate(ms):
                A(f"v_mfma_f32_16x16x32_bf16 {vr(ACC+4*q,4)}, {vr(AF+32*b+4*r,4)}, {vr(BF+32*b+4*(q-r),4)}, {vr(ACC+4*q,4)}")
                if i < len(nxt): A(nxt[i])
    A("s_barrier")
    A(f"s_lshl_b32 s76, s{sW}, 12\nv_lshl_add_u32 v6, v1, 4, s76\ns_xor_b32 s76, s76, 4096\nv_lshl_add_u32 v7, v1, 4, s76\ns_nop 7")
    L1 = A.label("cv"); L2 = A.label("cv")
    A(f"s_cmp_eq_u32 s73, 0\ns_cbranch_scc1 {L1}")
    for r in range(16): A(f"v_swap_b32 v{ACC+r}, v{ACC+16+r}")
    A(f"{L1}:\ns_nop 1")
    for q in range(4): A(f"ds_write_b128 v6, {vr(ACC+16+4*q,4)} offset:{1024*q}")
    A(f"s_lshl_b32 s77, s73, 3\ns_add_u32 s75, s74, s77\ns_add_u32 s75, s75, {U_BASE + 480}\nv_lshlrev_b32 v8, 5, v4\nv_lshl_add_u32 v8, v3, 3, v8\nv_add_u32 v9, s75, v8")
    for q in range(4): A(f"ds_read_b64 {vr(AF+2*q,2)}, v9 offset:{512*q}")
    A("s_waitcnt lgkmcnt(0)\ns_barrier")
    for q in range(4): A(f"ds_read_b128 {vr(ACC+16+4*q,4)}, v7 offset:{1024*q}")
    T = AF + 8
    for j in range(8):
        A(f"v_lshlrev_b32 v{T+2*j}, 16, v{AF+j}\nv_and_b32 v{T+2*j+1}, 0xffff0000, v{AF+j}")
    for j in range(16): A(f"v_mul_f32 v{T+j}, v{T+j}, v45")
    for j in range(8): A(f"v_cvt_pk_bf16_f32 v{AF+j}, v{T+2*j}, v{T+2*j+1}")
    for j in range(8):
        A(f"v_lshlrev_b32 v{T+2*j}, 16, v{AF+j}\nv_and_b32 v{T+2*j+1}, 0xffff0000, v{AF+j}")
    A("s_waitcnt lgkmcnt(0)")
    for j in range(16): A(f"v_add_f32 v{ACC+j}, v{ACC+j}, v{ACC+16+j}")
    for j in range(8): A(f"v_cvt_pk_bf16_f32 v{AF+j}, v{ACC+2*j}, v{ACC+2*j+1}")
    for j in range(8):
        A(f"v_lshlrev_b32 v{ACC+2*j}, 16, v{AF+j}\nv_and_b32 v{ACC+2*j+1}, 0xffff0000, v{AF+j}")
    for j in range(16): A(f"v_add_f32 v{ACC+j}, v{ACC+j}, v{T+j}")
    for j in range(8): A(f"v_cvt_pk_bf16_f32 v{AF+j}, v{ACC+2*j}, v{ACC+2*j+1}")
    A(f"s_lshl_b32 s75, s{sCP}, 13\ns_lshl_b32 s76, s72, 12\ns_add_u32 s75, s75, s76\ns_add_u32 s75, s75, s77")
    for q in range(4): A(f"buffer_store_dwordx2 {vr(AF+2*q,2)}, v8, s[4:7], s75 offen offset:{512*q} {st}")
    return 208

HEADER = open("cdna_kernels/" + NAME + ".s.ref").read().split("; Override launch")[0]

def build_multi(cfg):
    A = Asm()
    A.begin("t_kernel"); A("s_cmp_ge_u32 s2, 256\ns_cbranch_scc1 t_end"); ts_begin(A, cfg); load_ptrs(A)
    A("v_and_b32 v1, 63, v0"); wave_id(A, 70, 2)
    A("s_lshr_b32 s80, s2, 3\ns_and_b32 s81, s2, 7\ns_waitcnt lgkmcnt(0)")
    role_t_issue(A, cfg, 80, 81, 2, 70); role_t_finish(A, cfg, 80, 81, 2, 70, 0)
    ts_end(A, cfg, 0, 2); A("t_end:\ns_endpgm"); A.end("t_kernel", 48); A.launch("t_kernel", 256, 256, SSM_LDS)
    A.begin("g1_kernel"); A("s_cmp_ge_u32 s2, 256\ns_cbranch_scc1 g1_end"); ts_begin(A, cfg); load_ptrs(A)
    A("s_and_b32 s80, s2, 7\ns_lshr_b32 s81, s2, 3\ns_cmp_ge_u32 s81, 28\ns_cbranch_scc1 g1_skip")
    A("s_lshl_b32 s80, s80, 1\ns_and_b32 s82, s81, 1\ns_add_u32 s80, s80, s82\ns_lshr_b32 s81, s81, 1\ns_waitcnt lgkmcnt(0)")
    nv = role_g1(A, cfg, 80, 81)
    A("g1_skip:\ns_waitcnt lgkmcnt(0)")
    ts_end(A, cfg, 1, 2); A("g1_end:\ns_endpgm"); A.end("g1_kernel", nv); A.launch("g1_kernel", 256, 256, 81920)
    A.begin("kc_kernel"); A("s_cmp_ge_u32 s2, 256\ns_cbranch_scc1 kc_end"); ts_begin(A, cfg); load_ptrs(A)
    A("v_and_b32 v1, 63, v0"); wave_id(A, 70, 2); A("s_waitcnt lgkmcnt(0)")
    role_k_issue(A, cfg, 2, 70); role_u_issue(A, cfg, 2, 70); role_k_pre(A, cfg, 70); role_k_tables(A, cfg, 70, 2)
    role_k_mfma(A, cfg, 70); role_k_expand(A, cfg, 70); role_u_store(A, cfg, 0); nv = role_conv(A, cfg, 2, 70)
    ts_end(A, cfg, 2, 2); A("kc_end:\ns_endpgm"); A.end("kc_kernel", nv); A.launch("kc_kernel", 256, 256, SSM_LDS)
    A.begin("g2_kernel"); A("s_cmp_ge_u32 s2, 256\ns_cbranch_scc1 g2_end"); ts_begin(A, cfg); load_ptrs(A)
    A("s_and_b32 s80, s2, 7\ns_lshr_b32 s81, s2, 3\ns_lshl_b32 s80, s80, 2\ns_lshr_b32 s82, s81, 3\ns_add_u32 s80, s80, s82\ns_and_b32 s81, s81, 7\ns_waitcnt lgkmcnt(0)")
    nv = role_g2(A, cfg, 80, 81)
    ts_end(A, cfg, 3, 2); A("g2_end:\ns_endpgm"); A.end("g2_kernel", nv); A.launch("g2_kernel", 256, 256, 49152)
    return A.text(HEADER)

if __name__ == "__main__":
    mode = sys.argv[1]; out = sys.argv[2]
    cfg = {}
    for kv in sys.argv[3:]:
        k, v = kv.split("=")
        cfg[k] = int(v) if v.lstrip("-").isdigit() else v
    open(out, "w").write(globals()["build_" + mode](cfg))
```

```python
import sys
from asmlib import *

WS_XT = 0; WS_AT = 2 << 20; WS_G = 4 << 20; WS_H = 8 << 20; WS_TS = 64 << 20
H_BYTES = 64 * 112 * 1024
P = lambda i: 36 + 2 * i
P_X, P_LA, P_AI, P_CR, P_CI, P_LDT, P_DS, P_BX, P_W1, P_B1, P_W2, P_B2, P_GW, P_OUT, P_DBG, P_WS = [P(i) for i in range(16)]
LOG2E = 0x3fb8aa3b; LOG2E_LO = 0x32a57060; LN2 = 0x3f317218; INV2PI = 0x3e22f983

def vr(a, n): return f"v[{a}:{a+n-1}]"

def load_ptrs(A):
    A("s_load_dwordx16 s[36:51], s[0:1], 0\ns_load_dwordx16 s[52:67], s[0:1], 64")

def wave_id(A, sdst, vtmp):
    A(f"v_lshrrev_b32 v{vtmp}, 6, v0\ns_nop 0\nv_readfirstlane_b32 s{sdst}, v{vtmp}\ns_nop 3")

def ts_begin(A, cfg):
    if cfg.get("ts"): A("s_memrealtime s[92:93]")
def ts_end(A, cfg, group, sidx):
    if not cfg.get("ts"): return
    L = A.label("ts")
    A(f"s_waitcnt vmcnt(0)\ns_barrier\ns_memrealtime s[94:95]\ns_waitcnt lgkmcnt(0)")
    A.srd(4, P_WS, 1 << 20, WS_TS + group * 8192)
    A(f"v_mov_b32 v4, s92\nv_mov_b32 v5, s93\nv_mov_b32 v6, s94\nv_mov_b32 v7, s95\ns_lshl_b32 s68, s{sidx}, 4\nv_mov_b32 v1, 0")
    A(f"v_cmp_eq_u32 vcc, 0, v0\ns_and_saveexec_b64 s[70:71], vcc\ns_cbranch_execz {L}\nbuffer_store_dwordx4 v[4:7], v1, s[4:7], s68 offen\n{L}:\ns_mov_b64 exec, -1")

def role_g1(A, cfg, sMT, sNT):
    st = cfg.get("hstore", "")
    sW, sROT, sXB, sWB, sT, sM0 = 70, 71, 72, 73, 74, 75
    A.srd(4, P_X, 2048 * 1024); A.srd(8, P_W1, 512 * 3584); A.srd(12, P_B1, 3584); A.srd(16, P_WS, H_BYTES, WS_H)
    wave_id(A, sW, 1)
    vL, vX, vWv, vA, vB, vT = 1, 2, 6, 10, 14, 22
    FR = 32; ACC = 64; BI = 128
    A(f"v_and_b32 v{vL}, 63, v0")
    A(f"s_and_b32 s{sT}, s{sW}, 1\ns_lshl_b32 s{sT}, s{sT}, 7\ns_lshl_b32 s{sM0}, s{sNT}, 8\ns_add_u32 s{sT}, s{sT}, s{sM0}")
    A(f"v_lshrrev_b32 v{vT}, 5, v{vL}\nv_lshlrev_b32 v{vT}, 3, v{vT}")
    for ft in range(2):
        for q in range(4):
            A(f"buffer_load_dwordx2 {vr(BI + 8*ft + 2*q, 2)}, v{vT}, s[12:15], s{sT} offen offset:{64*ft + 16*q}")
    A(f"v_lshrrev_b32 v{vT}, 3, v{vL}\nv_lshrrev_b32 v{vT+1}, 4, v{vL}\nv_and_b32 v{vT+2}, 7, v{vL}")
    A(f"s_lshl_b32 s{sT}, s{sW}, 15")
    A(f"v_lshl_add_u32 v{vT}, v{vT}, 10, s{sT}")
    for jj in range(4):
        A(f"v_add_u32 v{vT+3}, {4*(jj&1)}, v{vT+1}\nv_xor_b32 v{vT+3}, v{vT+2}, v{vT+3}\nv_lshl_add_u32 v{vX+jj}, v{vT+3}, 4, v{vT}")
        if jj: A(f"v_add_u32 v{vX+jj}, {jj*(8192-1024)}, v{vX+jj}")
    A(f"s_mul_i32 s{sT}, s{sW}, {16*3584}\nv_mul_u32_u24 v{vT}, 3584, v{vT+1}\nv_add_u32 v{vT}, s{sT}, v{vT}")
    A(f"v_and_b32 v{vT+2}, 15, v{vL}\nv_lshlrev_b32 v{vT+3}, 2, v{vT+1}\nv_xor_b32 v{vT+2}, v{vT+2}, v{vT+3}\nv_lshl_add_u32 v{vWv}, v{vT+2}, 4, v{vT}")
    for jj in range(1, 4):
        A(f"v_add_u32 v{vWv+jj}, {jj*(4*3584-1024)}, v{vWv}")
    A(f"s_add_u32 s{sROT}, s{sMT}, s{sNT}\ns_lshl_b32 s{sXB}, s{sMT}, 17\ns_lshl_b32 s{sWB}, s{sNT}, 8\ns_lshl_b32 s{sM0}, s{sW}, 12")
    def issue(item):
        s, isw = item >> 1, item & 1
        A(f"s_add_u32 s{sT}, s{sROT}, {s}\ns_and_b32 s{sT}, s{sT}, 7")
        if isw: A(f"s_mul_i32 s{sT}, s{sT}, {64*3584}\ns_add_u32 s{sT}, s{sT}, s{sWB}")
        else: A(f"s_lshl_b32 s{sT}, s{sT}, 7\ns_add_u32 s{sT}, s{sT}, s{sXB}")
        A(f"s_add_u32 m0, s{sM0}, {(item % 5) * 16384}\ns_nop 0")
        for jj in range(4):
            A(f"buffer_load_dwordx4 v{(vWv if isw else vX)+jj}, s[{'8:11' if isw else '4:7'}], s{sT} offen offset:{jj*1024} lds")
    for it in range(5): issue(it)
    A(f"v_bfe_u32 v{vT}, v{vL}, 2, 2")
    A(f"v_lshrrev_b32 v{vT+1}, 5, v{vL}")
    A(f"v_lshl_add_u32 v{vT+2}, v{vT+1}, 3, v{vT}\nv_lshlrev_b32 v{vT+2}, 8, v{vT+2}")
    A(f"v_and_b32 v{vT+3}, 1, v{vL}\nv_lshl_add_u32 v{vT+2}, v{vT+3}, 3, v{vT+2}")
    A(f"v_bfe_u32 v{vT+3}, v{vL}, 4, 1\nv_bfe_u32 v{vT+4}, v{vL}, 1, 1\nv_lshl_add_u32 v{vT+3}, v{vT+3}, 1, v{vT+4}")
    A(f"s_and_b32 s{sT}, s{sW}, 1\ns_lshl_b32 s{sT}, s{sT}, 3\nv_add_u32 v{vT+3}, s{sT}, v{vT+3}")
    A(f"v_lshlrev_b32 v{vT+4}, 2, v{vT}\nv_xor_b32 v{vT+3}, v{vT+3}, v{vT+4}")
    A(f"v_lshl_add_u32 v{vA}, v{vT+3}, 4, v{vT+2}\nv_xor_b32 v{vA+1}, 64, v{vA}")
    A(f"v_add_u32 v{vA+2}, 0x8000, v{vA}\nv_add_u32 v{vA+3}, 0x8000, v{vA+1}")
    A(f"s_lshr_b32 s{sT}, s{sW}, 1\ns_lshl_b32 s{sT}, s{sT}, 13\nv_and_b32 v{vT}, 31, v{vL}\nv_lshl_add_u32 v{vT+2}, v{vT}, 7, s{sT}")
    A(f"v_bfe_u32 v{vT+3}, v{vL}, 1, 3\nv_xor_b32 v{vT+3}, v{vT+3}, v{vT+1}\nv_lshl_add_u32 v{vB}, v{vT+3}, 4, v{vT+2}")
    for ks in range(1, 4): A(f"v_xor_b32 v{vB+ks}, {ks*32}, v{vB}")
    for ks in range(4): A(f"v_add_u32 v{vB+4+ks}, 0x8000, v{vB+ks}")
    A("s_waitcnt vmcnt(20)")
    for ft in range(2):
        for q in range(4):
            for d in range(2):
                src = BI + 8*ft + 2*q + d
                for lt in range(2):
                    a = ACC + 16*(2*ft + lt) + 4*q + 2*d
                    A(f"v_lshlrev_b32 v{a}, 16, v{src}\nv_and_b32 v{a+1}, 0xffff0000, v{src}")
    def reads(s, ks, buf):
        xs, wsl = (2*s) % 5, (2*s+1) % 5
        o = []
        fb = FR + 16*buf
        for ft in range(2):
            hi = wsl >= 2; base = (wsl - (2 if hi else 0)) * 16384
            for z in range(2):
                o.append(f"ds_read_b64_tr_b16 {vr(fb + 4*ft + 2*z, 2)}, v{vA + ft + (2 if hi else 0)} offset:{base + 4096*ks + 1024*z}")
        for lt in range(2):
            hi = xs >= 2; base = (xs - (2 if hi else 0)) * 16384
            o.append(f"ds_read_b128 {vr(fb + 8 + 4*lt, 4)}, v{vB + ks + (4 if hi else 0)} offset:{base + 4096*lt}")
        return [o[0], o[1], o[4], o[2], o[3], o[5]]
    def mfma(buf, i):
        ft, lt = [(0,0),(1,0),(0,1),(1,1)][i]
        fb = FR + 16*buf; a = ACC + 16*(2*ft+lt)
        return f"v_mfma_f32_32x32x16_bf16 {vr(a,16)}, {vr(fb+4*ft,4)}, {vr(fb+8+4*lt,4)}, {vr(a,16)}"
    A("s_waitcnt vmcnt(12)\ns_barrier")
    for r in reads(0, 0, 0): A(r)
    for s in range(8):
        for ks in range(4):
            buf = ks & 1
            A("s_waitcnt lgkmcnt(0)")
            nxt = None
            if ks < 3: nxt = reads(s, ks+1, buf ^ 1)
            elif s < 7:
                A(f"s_waitcnt vmcnt({4 if 2*s+4 <= 15 else 0})\ns_barrier")
                nxt = reads(s+1, 0, buf ^ 1)
            A(mfma(buf, 0))
            if nxt: [A(r) for r in nxt[:3]]
            A(mfma(buf, 1))
            if nxt: [A(r) for r in nxt[3:]]
            A(mfma(buf, 2))
            if ks == 3 and 2*s+5 <= 15: issue(2*s+5)
            A(mfma(buf, 3))
            if ks == 3 and 2*s+6 <= 15: issue(2*s+6)
    A(f"s_lshl_b32 s{sT}, s{sMT}, 2\ns_and_b32 s{sM0}, s{sW}, 2\ns_add_u32 s{sT}, s{sT}, s{sM0}\ns_mul_i32 s{sT}, s{sT}, 112")
    A(f"s_lshl_b32 s{sM0}, s{sNT}, 3\ns_add_u32 s{sT}, s{sT}, s{sM0}\ns_and_b32 s{sM0}, s{sW}, 1\ns_lshl_b32 s{sM0}, s{sM0}, 2\ns_add_u32 s{sT}, s{sT}, s{sM0}\ns_lshl_b32 s{sT}, s{sT}, 10")
    A(f"s_add_u32 s{sM0}, s{sT}, {112*1024}\nv_lshlrev_b32 v{vT}, 4, v{vL}\ns_nop 7")
    for i, (ft, lt) in enumerate([(0,0),(1,0),(0,1),(1,1)]):
        a = ACC + 16*(2*ft+lt); o = FR + 8*i
        for r in range(16):
            A(f"v_max_f32 v{BI + r}, 0, v{a+r}")
        for r in range(16):
            A(f"v_mul_f32 v{BI + r}, v{BI + r}, v{BI + r}")
        for r in range(8):
            A(f"v_cvt_pk_bf16_f32 v{o + r}, v{BI + 2*r}, v{BI + 2*r + 1}")
        for hb in range(2):
            A(f"buffer_store_dwordx4 {vr(o + 4*hb, 4)}, v{vT}, s[16:19], s{sM0 if lt else sT} offen offset:{(2*ft+hb)*1024} {st}")
    return 144

def role_g2(A, cfg, sM2, sN2):
    D = cfg.get("g2depth", 4); NS = D + 1
    ld = cfg.get("hload", "")
    sW, sROT, sHB, sWB, sT, sM0, sFB, sT2 = 70, 71, 72, 73, 74, 75, 76, 77
    A.srd(4, P_WS, H_BYTES, WS_H); A.srd(8, P_W2, 1792 * 1024); A.srd(12, P_WS, 2 << 20, WS_AT); A.srd(16, P_WS, 16384, WS_G)
    A.srd(20, P_B2, 1024); A.srd(24, P_OUT, 2048 * 1024)
    wave_id(A, sW, 1)
    vL, vH, vWv, vA, vT = 1, 2, 4, 6, 8
    AF = 16; ACC = 32; HB = 96
    EP = HB + 8 * NS
    A(f"v_and_b32 v{vL}, 63, v0")
    A(f"s_and_b32 s{sT}, s{sW}, 1\ns_mul_i32 s{sT}, s{sT}, {112*1024}\nv_lshl_add_u32 v{vH}, v{vL}, 4, s{sT}\ns_sub_u32 s{sT}, {112*1024}, s{sT}\nv_lshl_add_u32 v{vH+1}, v{vL}, 4, s{sT}")
    A(f"v_lshrrev_b32 v{vT}, 3, v{vL}\nv_lshlrev_b32 v{vT}, 10, v{vT}\nv_bfe_u32 v{vT+1}, v{vL}, 4, 1\nv_lshlrev_b32 v{vT+1}, 2, v{vT+1}\nv_and_b32 v{vT+2}, 7, v{vL}\nv_xor_b32 v{vT+1}, v{vT+1}, v{vT+2}")
    A(f"v_lshl_add_u32 v{vWv}, v{vT+1}, 4, v{vT}\nv_add_u32 v{vWv+1}, 7168, v{vWv}")
    A(f"s_mul_i32 s{sHB}, s{sM2}, {2*112*1024}\ns_mul_i32 s{sT}, s{sW}, {28*1024}\ns_add_u32 s{sHB}, s{sHB}, s{sT}")
    A(f"s_lshl_b32 s{sWB}, s{sN2}, 7\ns_mul_i32 s{sT}, s{sW}, {28*16384}\ns_add_u32 s{sWB}, s{sWB}, s{sT}")
    A(f"s_mul_i32 s{sM0}, s{sW}, {NS*2048}")
    A(f"s_mul_i32 s{sFB}, s{sM2}, 7\ns_lshr_b32 s{sFB}, s{sFB}, 3\ns_mul_i32 s{sT}, s{sN2}, 7\ns_lshr_b32 s{sT}, s{sT}, 1\ns_add_u32 s{sFB}, s{sFB}, s{sT}\ns_cmp_ge_u32 s{sFB}, 28\ns_cselect_b32 s{sT}, 28, 0\ns_sub_u32 s{sFB}, s{sFB}, s{sT}")
    def issue(s):
        sl = s % NS
        A(f"s_lshl_b32 s{sT}, s{sFB}, 14\ns_add_u32 s{sT}, s{sT}, s{sWB}\ns_add_u32 m0, s{sM0}, {sl*2048}\ns_lshl_b32 s{sT2}, s{sFB}, 10\ns_add_u32 s{sT2}, s{sT2}, s{sHB}")
        A(f"buffer_load_dwordx4 v{vWv}, s[8:11], s{sT} offen lds\nbuffer_load_dwordx4 v{vWv+1}, s[8:11], s{sT} offen offset:1024 lds")
        for lt in range(2):
            A(f"buffer_load_dwordx4 {vr(HB + 8*sl + 4*lt, 4)}, v{vH+lt}, s[4:7], s{sT2} offen {ld}")
        A(f"s_add_u32 s{sFB}, s{sFB}, 1\ns_cmp_eq_u32 s{sFB}, 28\ns_cselect_b32 s{sFB}, 0, s{sFB}")
    for s in range(D): issue(s)
    A(f"v_bfe_u32 v{vT}, v{vL}, 2, 2\nv_lshrrev_b32 v{vT+1}, 5, v{vL}\nv_lshl_add_u32 v{vT+2}, v{vT+1}, 2, v{vT}\nv_lshlrev_b32 v{vT+2}, 7, v{vT+2}")
    A(f"v_and_b32 v{vT+3}, 1, v{vL}\nv_lshl_add_u32 v{vT+2}, v{vT+3}, 3, v{vT+2}\nv_add_u32 v{vT+2}, s{sM0}, v{vT+2}")
    A(f"v_bfe_u32 v{vT+3}, v{vL}, 4, 1\nv_bfe_u32 v{vT+4}, v{vL}, 1, 1\nv_lshl_add_u32 v{vT+3}, v{vT+3}, 1, v{vT+4}")
    A(f"v_bfe_u32 v{vT+4}, v{vL}, 3, 1\ns_lshr_b32 s{sT}, s{sW}, 1\nv_xor_b32 v{vT+4}, s{sT}, v{vT+4}\nv_lshl_add_u32 v{vT+3}, v{vT+4}, 2, v{vT+3}")
    A(f"v_lshl_add_u32 v{vA}, v{vT+3}, 4, v{vT+2}\nv_xor_b32 v{vA+1}, 64, v{vA}")
    for r in range(64): A(f"v_mov_b32 v{ACC+r}, 0")
    def reads(s):
        sl = s % NS; fb = AF + 8 * (s & 1)
        return [f"ds_read_b64_tr_b16 {vr(fb + 4*dt + 2*z, 2)}, v{vA+dt} offset:{sl*2048 + 1024*z}" for dt in range(2) for z in range(2)]
    def mfma(s, i):
        dt, lt = [(0,0),(0,1),(1,0),(1,1)][i]
        a = ACC + 16*(2*dt+lt)
        return f"v_mfma_f32_32x32x16_bf16 {vr(a,16)}, {vr(AF + 8*(s&1) + 4*dt,4)}, {vr(HB + 8*(s%NS) + 4*lt,4)}, {vr(a,16)}"
    A(f"s_waitcnt vmcnt({4*(D-1)})")
    for r in reads(0): A(r)
    NEP = 16 + 4 + 1
    def ep_loads():
        if "wait_at" in cfg: cfg["wait_at"](A)
        A(f"s_lshl_b32 s{sT}, s{sN2}, 6\ns_lshr_b32 s{sT2}, s{sW}, 1\ns_lshl_b32 s{sT2}, s{sT2}, 5\ns_add_u32 s78, s{sT}, s{sT2}")
        A(f"s_lshl_b32 s{sT}, s{sM2}, 6\ns_and_b32 s{sT2}, s{sW}, 1\ns_lshl_b32 s{sT2}, s{sT2}, 5\ns_add_u32 s79, s{sT}, s{sT2}")
        A(f"v_and_b32 v{vT}, 31, v{vL}\nv_lshrrev_b32 v{vT+1}, 5, v{vL}")
        A(f"v_lshlrev_b32 v{vT+2}, 14, v{vT+1}\nv_lshl_add_u32 v{vT+2}, v{vT}, 1, v{vT+2}")
        A(f"s_lshl_b32 s{sT}, s78, 12\ns_lshl_b32 s{sT2}, s79, 1\ns_add_u32 s{sT}, s{sT}, s{sT2}")
        for r in range(16): A(f"v_mov_b32 v{EP+r}, 0")
        for r in range(16):
            dd = 8*(r >> 2) + (r & 3)
            A(f"s_add_u32 s{sT2}, s{sT}, {dd*4096}\nbuffer_load_short_d16_hi v{EP+r}, v{vT+2}, s[12:15], s{sT2} offen {cfg.get('aload','')}")
        A(f"v_lshlrev_b32 v{vT+3}, 3, v{vT+1}\ns_lshl_b32 s{sT}, s78, 1")
        for q in range(4): A(f"buffer_load_dwordx2 {vr(EP+16+2*q,2)}, v{vT+3}, s[20:23], s{sT} offen offset:{16*q}")
        A(f"v_lshlrev_b32 v{vT+3}, 3, v{vT}\ns_lshl_b32 s{sT}, s79, 3\nbuffer_load_dwordx2 {vr(EP+24,2)}, v{vT+3}, s[16:19], s{sT} offen {cfg.get('aload','')}")
    for s in range(28):
        if s + D < 28:
            issue(s + D); A(f"s_waitcnt vmcnt({4*(D-1)}) lgkmcnt(0)")
        else:
            rem = max(0, 27 - (s + 1))
            if s + D == 28: ep_loads()
            A(f"s_waitcnt vmcnt({4*rem + NEP}) lgkmcnt(0)")
        A(mfma(s, 0))
        if s < 27: [A(r) for r in reads(s+1)]
        A(mfma(s, 1)); A(mfma(s, 2)); A(mfma(s, 3))
    A("s_barrier")
    A(f"v_lshlrev_b32 v{vT+4}, 4, v{vL}")
    for a in range(1, 4):
        A(f"s_xor_b32 s{sT}, s{sW}, {a}\ns_mul_i32 s{sT}, s{sT}, {3*4096}\nv_add_u32 v{vT+4+a}, s{sT}, v{vT+4}")
    A(f"s_mul_i32 s{sT}, s{sW}, {3*4096}\nv_add_u32 v{vT+4}, s{sT}, v{vT+4}\ns_nop 7")
    for a in range(1, 4):
        for q in range(4):
            A(f"ds_write_b128 v{vT+4+a}, {vr(ACC+16*a+4*q,4)} offset:{(a-1)*4096 + q*1024}")
    A("s_waitcnt lgkmcnt(0)\ns_barrier")
    for a in range(1, 4):
        for q in range(4):
            A(f"ds_read_b128 {vr(ACC+16*a+4*q,4)}, v{vT+4} offset:{(a-1)*4096 + q*1024}")
    for a in range(1, 4):
        A(f"s_waitcnt lgkmcnt({4*(3-a)})")
        for r in range(16): A(f"v_add_f32 v{ACC+r}, v{ACC+r}, v{ACC+16*a+r}")
    A("s_waitcnt vmcnt(0)")
    T = ACC + 16
    def rnd(dst, src, n):
        for r in range(0, n, 2): A(f"v_cvt_pk_bf16_f32 v{T+32+r//2}, v{src+r}, v{src+r+1}")
        for r in range(0, n, 2): A(f"v_lshlrev_b32 v{dst+r}, 16, v{T+32+r//2}\nv_and_b32 v{dst+r+1}, 0xffff0000, v{T+32+r//2}")
    rnd(ACC, ACC, 16)
    for r in range(0, 16, 2):
        A(f"v_lshlrev_b32 v{T+r}, 16, v{EP+16+r//2}\nv_and_b32 v{T+r+1}, 0xffff0000, v{EP+16+r//2}")
    for r in range(16): A(f"v_add_f32 v{ACC+r}, v{ACC+r}, v{T+r}")
    rnd(ACC, ACC, 16)
    for r in range(16): A(f"v_mul_f32 v{ACC+r}, v{ACC+r}, v{EP+25}\nv_mul_f32 v{EP+r}, v{EP+r}, v{EP+24}")
    rnd(ACC, ACC, 16); rnd(EP, EP, 16)
    for r in range(16): A(f"v_add_f32 v{ACC+r}, v{ACC+r}, v{EP+r}")
    for r in range(0, 16, 2): A(f"v_cvt_pk_bf16_f32 v{T+r//2}, v{ACC+r}, v{ACC+r+1}")
    A(f"v_lshlrev_b32 v{vT+2}, 10, v{vT}\nv_lshl_add_u32 v{vT+2}, v{vT+1}, 4, v{vT+2}\ns_lshl_b32 s{sT}, s79, 10\ns_lshl_b32 s{sT2}, s78, 1\ns_add_u32 s{sT}, s{sT}, s{sT2}")
    for p in range(2):
        A(f"v_permlane32_swap_b32 v{T+4*p}, v{T+4*p+2}\nv_permlane32_swap_b32 v{T+4*p+1}, v{T+4*p+3}")
    A("s_nop 1")
    for p in range(2):
        A(f"buffer_store_dwordx4 {vr(T+4*p,4)}, v{vT+2}, s[24:27], s{sT} offen offset:{32*p}")
    return EP + 26

TAB_PITCH = 528; TAB_CH = 57 * TAB_PITCH
SP_BASE = 60416; SP_CH = 4128
CP_PITCH = 4160; CP_CH = 8 * CP_PITCH
U_BASE = 68672; U_CH = 4576
SSM_LDS = 81920

def exp_to(A, dst, src, t0, t1, sL2E, sL2ELO, sLN2):
    A(f"v_mul_f32 v{t0}, s{sL2E}, v{src}\nv_fma_f32 v{t1}, v{src}, s{sL2E}, -v{t0}\nv_fma_f32 v{t1}, v{src}, s{sL2ELO}, v{t1}")
    A(f"v_exp_f32 v{dst}, v{t0}\nv_mul_f32 v{t1}, s{sLN2}, v{t1}\nv_fma_f32 v{dst}, v{dst}, v{t1}, v{dst}")

def role_t_issue(A, cfg, sT64, sDG, sGR, sW):
    A.srd(4, P_X, 2048 * 1024); A.srd(8, P_GW, 1024)
    A(f"v_lshrrev_b32 v2, 3, v1\nv_lshlrev_b32 v2, 10, v2\nv_and_b32 v3, 7, v1\nv_lshl_add_u32 v2, v3, 4, v2\nv_add_u32 v3, 7168, v2")
    A(f"s_lshl_b32 s72, s{sT64}, 16\ns_lshl_b32 s73, s{sDG}, 7\ns_add_u32 s72, s72, s73\ns_lshl_b32 s73, s{sW}, 14\ns_add_u32 s72, s72, s73")
    A(f"s_lshl_b32 s73, s{sW}, 11\ns_add_u32 m0, s73, {SP_BASE}\ns_nop 0")
    A(f"buffer_load_dwordx4 v2, s[4:7], s72 offen lds\nbuffer_load_dwordx4 v3, s[4:7], s72 offen offset:1024 lds")
    A(f"v_lshlrev_b32 v4, 5, v0\ns_lshl_b32 s72, s{sGR}, 13\nv_and_b32 v5, 0x3ff, v4")
    A(f"buffer_load_dwordx4 v[8:11], v4, s[4:7], s72 offen\nbuffer_load_dwordx4 v[12:15], v4, s[4:7], s72 offen offset:16")
    A(f"buffer_load_dwordx4 v[16:19], v5, s[8:11], 0 offen\nbuffer_load_dwordx4 v[20:23], v5, s[8:11], 0 offen offset:16")
    return 6

def role_t_finish(A, cfg, sT64, sDG, sGR, sW, younger):
    st = cfg.get("xtstore", "")
    A.srd(4, P_WS, 2 << 20, WS_XT); A.srd(8, P_WS, 16384, WS_G)
    A(f"v_lshrrev_b32 v2, 4, v1\nv_bfe_u32 v3, v1, 2, 2\nv_lshl_add_u32 v3, v2, 3, v3\nv_lshlrev_b32 v3, 7, v3\nv_and_b32 v4, 3, v1\nv_lshl_add_u32 v3, v4, 3, v3")
    A(f"s_lshl_b32 s72, s{sW}, 5\ns_add_u32 s72, s72, {SP_BASE}\nv_add_u32 v3, s72, v3")
    A(f"v_and_b32 v4, 15, v1\nv_lshlrev_b32 v4, 12, v4\nv_lshl_add_u32 v4, v2, 4, v4")
    A(f"s_lshl_b32 s72, s{sDG}, 18\ns_lshl_b32 s73, s{sW}, 16\ns_add_u32 s72, s72, s73\ns_lshl_b32 s73, s{sT64}, 7\ns_add_u32 s72, s72, s73")
    A(f"s_waitcnt vmcnt({younger + 4})\ns_barrier")
    for i in range(2):
        for z in range(2):
            A(f"ds_read_b64_tr_b16 {vr(24 + 4*i + 2*z, 2)}, v3 offset:{4096*i + 512*z}")
    A("s_waitcnt lgkmcnt(0)")
    for i in range(2):
        A(f"buffer_store_dwordx4 {vr(24+4*i,4)}, v4, s[4:7], s72 offen offset:{64*i} {st}")
    A(f"s_waitcnt vmcnt({younger + 2})")
    for j in range(8):
        A(f"v_lshlrev_b32 v32, 16, v{8+j}\nv_and_b32 v33, 0xffff0000, v{8+j}\nv_lshlrev_b32 v34, 16, v{16+j}\nv_and_b32 v35, 0xffff0000, v{16+j}")
        A(f"v_mul_f32 v32, v32, v34\nv_mul_f32 v33, v33, v35\nv_cvt_pk_bf16_f32 v34, v32, v33\nv_lshlrev_b32 v32, 16, v34\nv_and_b32 v33, 0xffff0000, v34")
        if j == 0: A("v_add_f32 v36, v32, v33")
        else: A("v_add_f32 v36, v36, v32\nv_add_f32 v36, v36, v33")
    for m in (1, 2, 4, 8, 16):
        A(f"ds_swizzle_b32 v32, v36 offset:{(m << 10) | 0x1f}\ns_waitcnt lgkmcnt(0)\nv_add_f32 v36, v36, v32")
    A(f"v_cvt_pk_bf16_f32 v36, v36, v36\nv_and_b32 v36, 0xffff0000, v36\nv_sub_f32 v36, 0, v36")
    A(f"s_mov_b32 s74, {LOG2E}\ns_mov_b32 s75, {LOG2E_LO}\ns_mov_b32 s76, {LN2}")
    exp_to(A, 32, 36, 33, 34, 74, 75, 76)
    A("v_add_f32 v32, 1.0, v32\nv_rcp_f32 v33, v32\ns_nop 0\nv_fma_f32 v34, -v32, v33, 1.0\nv_fma_f32 v34, v34, v33, v33")
    A("v_cmp_class_f32 vcc, v34, 3\ns_nop 1\nv_cndmask_b32 v34, v34, v33, vcc")
    A("v_cvt_pk_bf16_f32 v34, v34, v34\nv_and_b32 v34, 0xffff0000, v34\nv_sub_f32 v35, 1.0, v34\nv_cvt_pk_bf16_f32 v35, v35, v35\nv_and_b32 v35, 0xffff0000, v35")
    L = A.label("gst")
    A(f"v_lshrrev_b32 v32, 5, v0\nv_lshlrev_b32 v32, 3, v32\ns_lshl_b32 s72, s{sGR}, 6\nv_and_b32 v33, 31, v0\nv_cmp_eq_u32 vcc, 0, v33\ns_and_saveexec_b64 s[74:75], vcc")
    A(f"buffer_store_dwordx2 v[34:35], v32, s[8:11], s72 offen {st}\ns_mov_b64 exec, s[74:75]")

def role_k_issue(A, cfg, sCP, sW):
    A.srd(12, P_LA, 131072); A.srd(16, P_AI, 131072); A.srd(20, P_CR, 131072); A.srd(24, P_CI, 131072)
    A.srd(28, P_LDT, 1024); A.srd(32, P_DS, 1024)
    A(f"v_lshlrev_b32 v6, 1, v0\ns_lshl_b32 s72, s{sCP}, 9")
    for i in range(4): A(f"buffer_load_ushort v{40+i}, v6, s[{12+4*i}:{15+4*i}], s72 offen")
    A(f"v_lshrrev_b32 v7, 7, v0\nv_lshlrev_b32 v7, 1, v7\ns_lshl_b32 s72, s{sCP}, 2")
    A(f"buffer_load_ushort v44, v7, s[28:31], s72 offen\nbuffer_load_ushort v45, v7, s[32:35], s72 offen")
    return 6

def role_u_issue(A, cfg, sCP, sW):
    A.srd(4, P_WS, 2 << 20, WS_XT)
    A(f"v_lshlrev_b32 v6, 5, v0\ns_lshl_b32 s72, s{sCP}, 13")
    A(f"buffer_load_dwordx4 v[48:51], v6, s[4:7], s72 offen {cfg.get('xtload','')}\nbuffer_load_dwordx4 v[52:55], v6, s[4:7], s72 offen offset:16 {cfg.get('xtload','')}")

def role_k_pre(A, cfg, sW):
    A("v_lshlrev_b32 v72, 3, v0\nv_sub_u32 v72, 2040, v72\nv_cvt_f32_u32 v72, v72")
    for d in range(0, 8, 2):
        A(f"v_add_f32 v73, {float(d)}, v72" if d in (2, 4) else (f"v_mov_b32 v73, v72" if d == 0 else f"v_add_f32 v73, 0x40c00000, v72"))
        A(f"v_add_f32 v74, 1.0, v73\nv_cvt_pk_bf16_f32 v75, v73, v74\nv_lshlrev_b32 v73, 16, v75\nv_and_b32 v74, 0xffff0000, v75\nv_cvt_u32_f32 v73, v73\nv_cvt_u32_f32 v74, v74")
        A(f"v_lshlrev_b32 v{56+d}, 1, v73\nv_lshlrev_b32 v{57+d}, 1, v74")
    A("v_and_b32 v72, 15, v1\nv_lshlrev_b32 v72, 3, v72\nv_lshrrev_b32 v73, 4, v1")
    A(f"s_lshr_b32 s72, s{sW}, 1\ns_mul_i32 s72, s72, {SP_CH}\ns_add_u32 s72, s72, {SP_BASE}")
    for r in range(4):
        A(f"v_lshl_add_u32 v74, v73, 9, v72\nv_add_u32 v74, {1024 + 128*r}, v74\nv_min_u32 v74, 2049, v74\nv_lshl_add_u32 v{68+r}, v74, 1, s72")
    A("v_lshrrev_b32 v74, 1, v73\nv_lshlrev_b32 v74, 7, v74\nv_and_b32 v75, 1, v73\nv_lshl_add_u32 v74, v75, 2, v74")
    A("v_lshlrev_b32 v75, 7, v73\nv_add_u32 v75, 256, v75\nv_lshlrev_b32 v76, 8, v73\nv_cmp_gt_u32 vcc, 2, v73\nv_mov_b32 v77, 4\nv_mov_b32 v78, 128")
    A("v_cndmask_b32 v75, v76, v75, vcc\nv_cndmask_b32 v76, v77, 2, vcc\nv_cndmask_b32 v77, v78, v77, vcc")
    A(f"s_and_b32 s73, s{sW}, 1\ns_cmp_eq_u32 s73, 0\ns_cselect_b64 vcc, -1, 0\ns_nop 1")
    A("v_cndmask_b32 v74, v75, v74, vcc\nv_cndmask_b32 v76, v76, 1, vcc\nv_cndmask_b32 v77, v77, 2, vcc\nv_add_u32 v74, v74, v72")
    A("v_lshl_add_u32 v64, v74, 1, s72\nv_lshl_add_u32 v65, v76, 1, v64\nv_lshl_add_u32 v66, v77, 1, v64\nv_lshl_add_u32 v67, v76, 1, v66")
    A("v_mov_b32 v76, 0\nv_mov_b32 v77, 0\nv_mov_b32 v78, 0\nv_mov_b32 v79, 0")
    A(f"v_lshlrev_b32 v72, 4, v0\nv_cmp_gt_u32 vcc, 30, v0\ns_and_saveexec_b64 s[74:75], vcc")
    A(f"v_add_u32 v72, {U_BASE}, v72\nds_write_b128 v72, v[76:79]\nds_write_b128 v72, v[76:79] offset:{U_CH}\ns_mov_b64 exec, s[74:75]")

def role_k_tables(A, cfg, sW, younger):
    A(f"s_mov_b32 s74, {LOG2E}\ns_mov_b32 s75, {LOG2E_LO}\ns_mov_b32 s76, {LN2}\ns_mov_b32 s77, {INV2PI}")
    A(f"s_lshr_b32 s72, s{sW}, 1\ns_mul_i32 s72, s72, {TAB_CH}\nv_and_b32 v7, 127, v0\nv_lshl_add_u32 v7, v7, 2, s72")
    A(f"s_waitcnt vmcnt({younger})")
    for i in range(6): A(f"v_lshlrev_b32 v{40+i}, 16, v{40+i}")
    exp_to(A, 80, 44, 82, 83, 74, 75, 76)
    exp_to(A, 81, 40, 84, 85, 74, 75, 76)
    A("v_cvt_pk_bf16_f32 v82, v80, v81\nv_lshlrev_b32 v80, 16, v82\nv_and_b32 v81, 0xffff0000, v82")
    A("v_mul_f32 v81, v81, v80\nv_mul_f32 v41, v41, v80\nv_add_f32 v80, v80, v80")
    A("v_mul_f32 v81, s74, v81\nv_mul_f32 v41, s77, v41")
    G, V, W1, W8, W128, W2, W4, Tm = 84, 86, 88, 90, 92, 94, 96, 98
    A(f"v_mul_f32 v{G}, v42, v80\nv_mul_f32 v{G+1}, v43, v80")
    for (W, p, conj) in ((W1, "1.0", 0), (W8, "0x41000000", 1), (W128, "0x43000000", 0)):
        A(f"v_mul_f32 v{Tm}, {p}, v81\nv_mul_f32 v{Tm+1}, {p}, v41\nv_exp_f32 v{Tm}, -v{Tm}\nv_fract_f32 v{Tm+1}, v{Tm+1}")
        A(f"v_cos_f32 v{W}, v{Tm+1}\nv_sin_f32 v{W+1}, v{Tm+1}\ns_nop 0\nv_mul_f32 v{W}, v{W}, v{Tm}")
        A(f"v_mul_f32 v{W+1}, {'-' if conj else ''}v{W+1}, v{Tm}")
    tmp = [Tm + 2]
    def cm(d, a, b):
        t = tmp[0]; tmp[0] = Tm + 2 + ((tmp[0] - Tm - 2 + 2) % 8)
        return [f"v_mul_f32 v{t}, v{a+1}, v{b+1}", f"v_mul_f32 v{t+1}, v{a+1}, v{b}", f"v_fma_f32 v{d+1}, v{a}, v{b+1}, v{t+1}", f"v_fma_f32 v{d}, v{a}, v{b}, -v{t}"]
    pk = [Tm + 10]
    def put(row, a):
        t = pk[0]; pk[0] = Tm + 10 + ((pk[0] - Tm - 10 + 1) % 6)
        return [f"v_cvt_pk_bf16_f32 v{t}, v{a}, v{a+1}", f"ds_write_b32 v7, v{t} offset:{row*TAB_PITCH}"]
    X = Tm + 16
    s1 = ["v_mov_b32 v%d, 0x3f80" % (Tm + 18), f"ds_write_b32 v7, v{Tm+18} offset:{41*TAB_PITCH}"] + put(42, W8)
    s1 += cm(W2, W1, W1) + cm(W4, W2, W2) + cm(V, W8, W8) + put(43, V)
    for b in range(3, 16): s1 += cm(V, V, W8) + put(41 + b, V)
    s2 = []
    for a in range(17):
        if a: s2 += cm(G, G, W128)
        if a < 2:
            s2 += put(8*a, G) + cm(X, G, W1) + put(8*a+1, X)
            for c in range(2, 8): s2 += cm(X, X, W1) + put(8*a+c, X)
        elif a < 4:
            s2 += put(16 + 4*(a-2), G) + cm(X, G, W2) + put(16 + 4*(a-2) + 1, X)
            for c in range(2, 4): s2 += cm(X, X, W2) + put(16 + 4*(a-2) + c, X)
        elif a < 8:
            s2 += put(24 + 2*(a-4), G) + cm(X, G, W4) + put(24 + 2*(a-4) + 1, X)
        else:
            s2 += put(32 + (a-8), G)
    for l in s1 + s2: A(l)

def role_k_mfma(A, cfg, sW):
    A(f"s_lshr_b32 s72, s{sW}, 1\ns_mul_i32 s72, s72, {TAB_CH}\ns_and_b32 s73, s{sW}, 1\ns_mul_i32 s73, s73, {16*TAB_PITCH}")
    A(f"v_and_b32 v72, 15, v1\nv_mul_u32_u24 v72, {TAB_PITCH}, v72\nv_lshrrev_b32 v73, 4, v1\nv_lshl_add_u32 v72, v73, 4, v72\nv_add_u32 v72, s72, v72\nv_add_u32 v73, s73, v72")
    for r in range(8): A(f"v_mov_b32 v{80+r}, 0")
    A("s_waitcnt lgkmcnt(0)\ns_barrier")
    F = 88
    for ks in range(8):
        f = F + 12*ks
        A(f"ds_read_b128 {vr(f,4)}, v73 offset:{64*ks}\nds_read_b128 {vr(f+4,4)}, v72 offset:{32*TAB_PITCH + 64*ks}\nds_read_b128 {vr(f+8,4)}, v72 offset:{41*TAB_PITCH + 64*ks}")
        if ks == 3: pass
    for ks in range(8):
        f = F + 12*ks
        A(f"s_waitcnt lgkmcnt({min(15, 3*(7-ks))})")
        A(f"v_mfma_f32_16x16x32_bf16 v[80:83], {vr(f,4)}, {vr(f+8,4)}, v[80:83]\nv_mfma_f32_16x16x32_bf16 v[84:87], {vr(f+4,4)}, {vr(f+8,4)}, v[84:87]")
    A("s_nop 7")
    for r in range(0, 8, 2): A(f"v_cvt_pk_bf16_f32 v{88+r//2}, v{80+r}, v{81+r}")
    for r in range(8):
        A(f"ds_write_b16{'_d16_hi' if r & 1 else ''} v{64+r}, v{88+r//2}")

def role_k_expand(A, cfg, sW):
    A("v_lshlrev_b32 v72, 4, v0\nv_mov_b32 v76, 0\nv_mov_b32 v77, 0\nv_mov_b32 v78, 0\nv_mov_b32 v79, 0")
    A("s_waitcnt lgkmcnt(0)\ns_barrier")
    O = [80, 112]
    for ch in range(2):
        for j in range(4):
            A(f"ds_read_u16 v{O[ch]+j}, v{56 + 7 - 2*j} offset:{SP_BASE + ch*SP_CH}\nds_read_u16 v{O[ch]+8+j}, v{56 + 6 - 2*j} offset:{SP_BASE + ch*SP_CH}")
    A(f"v_cmp_eq_u32 vcc, 0, v0\ns_and_saveexec_b64 s[74:75], vcc\nds_write_b128 v72, v[76:79] offset:4096\nds_write_b128 v72, v[76:79] offset:{CP_CH + 4096}\ns_mov_b64 exec, s[74:75]")
    A("s_waitcnt lgkmcnt(0)")
    for ch in range(2):
        for j in range(4): A(f"v_lshl_or_b32 v{O[ch]+j}, v{O[ch]+8+j}, 16, v{O[ch]+j}")
        A(f"ds_write_b128 v72, {vr(O[ch],4)} offset:{ch*CP_CH}")
    A("s_waitcnt lgkmcnt(0)\ns_barrier")
    for ch in range(2): A(f"ds_read_b128 {vr(O[ch]+4,4)}, v72 offset:{ch*CP_CH + 16}")
    A(f"v_mul_u32_u24 v73, {CP_PITCH}, v0\nv_cmp_gt_u32 vcc, 16, v0\ns_and_saveexec_b64 s[74:75], vcc\nds_write_b128 v73, v[76:79] offset:4096\ns_mov_b64 exec, s[74:75]")
    A(f"v_add_u32 v73, {CP_CH}, v72")
    for ch in range(2):
        o = O[ch]; o2 = o + 8; e = o + 14; e2 = o + 22
        A("s_waitcnt lgkmcnt(0)" if ch == 0 else "")
        for j in range(6): A(f"v_mov_b32 v{o2+j}, v{o+1+j}")
        for j in range(7): A(f"v_alignbit_b32 v{e+j}, v{o+j+1}, v{o+j}, 16")
        for j in range(6): A(f"v_alignbit_b32 v{e2+j}, v{o+j+2}, v{o+j+1}, 16")
        ad = 72 if ch == 0 else 73
        src = {5: o2, 3: o + 2, 1: o2 + 2, 6: e, 4: e2, 2: e + 2, 0: e2 + 2}
        for s in (6, 5, 4, 3, 2, 1, 0):
            A(f"ds_write_b128 v{ad}, {vr(src[s],4)} offset:{(7-s)*CP_PITCH}")

def role_u_store(A, cfg, younger):
    A(f"v_lshrrev_b32 v74, 7, v0\nv_mul_u32_u24 v74, {U_CH}, v74\nv_and_b32 v75, 127, v0\nv_lshl_add_u32 v74, v75, 5, v74\nv_add_u32 v74, {U_BASE + 480}, v74")
    A(f"s_waitcnt vmcnt({younger})\nds_write_b128 v74, v[48:51]\nds_write_b128 v74, v[52:55] offset:16")

def role_conv(A, cfg, sCP, sW):
    st = cfg.get("atstore", "")
    ACC = 48; AF = 80; BF = 144
    A.srd(4, P_WS, 2 << 20, WS_AT)
    A(f"s_lshr_b32 s72, s{sW}, 1\ns_and_b32 s73, s{sW}, 1\ns_lshl_b32 s73, s73, 8")
    A(f"s_mul_i32 s74, s72, {CP_CH}\ns_sub_u32 s74, s74, s73\ns_add_u32 s74, s74, {7*CP_PITCH + 2*2024 - 64*59}")
    A(f"v_and_b32 v2, 7, v1\nv_mul_u32_u24 v2, {CP_PITCH}, v2\nv_sub_u32 v2, s74, v2\nv_lshrrev_b32 v3, 4, v1\nv_bfe_u32 v4, v1, 3, 1\nv_sub_u32 v4, v3, v4\nv_lshl_add_u32 v2, v4, 4, v2")
    A(f"s_mul_i32 s74, s72, {U_CH}\ns_sub_u32 s75, s74, s73\ns_add_u32 s75, s75, {U_BASE + 2*(224 - 96)}")
    A(f"v_and_b32 v4, 15, v1\nv_lshlrev_b32 v5, 5, v4\nv_lshl_add_u32 v5, v3, 4, v5\nv_add_u32 v5, s75, v5")
    A("s_waitcnt lgkmcnt(0)\ns_barrier")
    for r in range(32): A(f"v_mov_b32 v{ACC+r}, 0")
    def rd(ee):
        b = ee & 1; o = []
        for i in range(8):
            o.append(f"ds_read_b128 {vr(BF + 32*b + 4*i, 4)}, v5 offset:{512*i + 64*(3-ee)}")
            o.append(f"ds_read_b128 {vr(AF + 32*b + 4*(7-i), 4)}, v2 offset:{64*(59 - (ee + 8*(7-i)))}")
        return o
    for l in rd(0): A(l)
    for ee in range(4):
        b = ee & 1
        nxt = rd(ee+1) if ee < 3 else []
        ms = []
        for r in range(7, -1, -1):
            for q in range(r, 8):
                ms.append((r, q))
        if ee == 0:
            done = -1
            for (r, q) in ms:
                need = 7 - r
                if need > done:
                    A(f"s_waitcnt lgkmcnt({min(15, 16 - 2*(need+1))})"); done = need
                    if need == 7:
                        for l in nxt: A(l)
                A(f"v_mfma_f32_16x16x32_bf16 {vr(ACC+4*q,4)}, {vr(AF+32*b+4*r,4)}, {vr(BF+32*b+4*(q-r),4)}, {vr(ACC+4*q,4)}")
        else:
            A("s_waitcnt lgkmcnt(0)")
            for i, (r, q) in enumerate(ms):
                A(f"v_mfma_f32_16x16x32_bf16 {vr(ACC+4*q,4)}, {vr(AF+32*b+4*r,4)}, {vr(BF+32*b+4*(q-r),4)}, {vr(ACC+4*q,4)}")
                if i < len(nxt): A(nxt[i])
    A("s_barrier")
    A(f"s_lshl_b32 s76, s{sW}, 12\nv_lshl_add_u32 v6, v1, 4, s76\ns_xor_b32 s76, s76, 4096\nv_lshl_add_u32 v7, v1, 4, s76\ns_nop 7")
    L1 = A.label("cv"); L2 = A.label("cv")
    A(f"s_cmp_eq_u32 s73, 0\ns_cbranch_scc1 {L1}")
    for r in range(16): A(f"v_swap_b32 v{ACC+r}, v{ACC+16+r}")
    A(f"{L1}:\ns_nop 1")
    for q in range(4): A(f"ds_write_b128 v6, {vr(ACC+16+4*q,4)} offset:{1024*q}")
    A(f"s_lshl_b32 s77, s73, 3\ns_add_u32 s75, s74, s77\ns_add_u32 s75, s75, {U_BASE + 480}\nv_lshlrev_b32 v8, 5, v4\nv_lshl_add_u32 v8, v3, 3, v8\nv_add_u32 v9, s75, v8")
    for q in range(4): A(f"ds_read_b64 {vr(AF+2*q,2)}, v9 offset:{512*q}")
    A("s_waitcnt lgkmcnt(0)\ns_barrier")
    for q in range(4): A(f"ds_read_b128 {vr(ACC+16+4*q,4)}, v7 offset:{1024*q}")
    T = AF + 8
    for j in range(8):
        A(f"v_lshlrev_b32 v{T+2*j}, 16, v{AF+j}\nv_and_b32 v{T+2*j+1}, 0xffff0000, v{AF+j}")
    for j in range(16): A(f"v_mul_f32 v{T+j}, v{T+j}, v45")
    for j in range(8): A(f"v_cvt_pk_bf16_f32 v{AF+j}, v{T+2*j}, v{T+2*j+1}")
    for j in range(8):
        A(f"v_lshlrev_b32 v{T+2*j}, 16, v{AF+j}\nv_and_b32 v{T+2*j+1}, 0xffff0000, v{AF+j}")
    A("s_waitcnt lgkmcnt(0)")
    for j in range(16): A(f"v_add_f32 v{ACC+j}, v{ACC+j}, v{ACC+16+j}")
    for j in range(8): A(f"v_cvt_pk_bf16_f32 v{AF+j}, v{ACC+2*j}, v{ACC+2*j+1}")
    for j in range(8):
        A(f"v_lshlrev_b32 v{ACC+2*j}, 16, v{AF+j}\nv_and_b32 v{ACC+2*j+1}, 0xffff0000, v{AF+j}")
    for j in range(16): A(f"v_add_f32 v{ACC+j}, v{ACC+j}, v{T+j}")
    for j in range(8): A(f"v_cvt_pk_bf16_f32 v{AF+j}, v{ACC+2*j}, v{ACC+2*j+1}")
    A(f"s_lshl_b32 s75, s{sCP}, 13\ns_lshl_b32 s76, s72, 12\ns_add_u32 s75, s75, s76\ns_add_u32 s75, s75, s77")
    for q in range(4): A(f"buffer_store_dwordx2 {vr(AF+2*q,2)}, v8, s[4:7], s75 offen offset:{512*q} {st}")
    return 208

HEADER = open("cdna_kernels/" + NAME + ".s.ref").read().split("; Override launch")[0]

def build_multi(cfg):
    A = Asm()
    A.begin("t_kernel"); A("s_cmp_ge_u32 s2, 256\ns_cbranch_scc1 t_end"); ts_begin(A, cfg); load_ptrs(A)
    A("v_and_b32 v1, 63, v0"); wave_id(A, 70, 2)
    A("s_lshr_b32 s80, s2, 3\ns_and_b32 s81, s2, 7\ns_waitcnt lgkmcnt(0)")
    role_t_issue(A, cfg, 80, 81, 2, 70); role_t_finish(A, cfg, 80, 81, 2, 70, 0)
    ts_end(A, cfg, 0, 2); A("t_end:\ns_endpgm"); A.end("t_kernel", 48); A.launch("t_kernel", 256, 256, SSM_LDS)
    A.begin("g1_kernel"); A("s_cmp_ge_u32 s2, 256\ns_cbranch_scc1 g1_end"); ts_begin(A, cfg); load_ptrs(A)
    A("s_and_b32 s80, s2, 7\ns_lshr_b32 s81, s2, 3\ns_cmp_ge_u32 s81, 28\ns_cbranch_scc1 g1_skip")
    A("s_lshl_b32 s80, s80, 1\ns_and_b32 s82, s81, 1\ns_add_u32 s80, s80, s82\ns_lshr_b32 s81, s81, 1\ns_waitcnt lgkmcnt(0)")
    nv = role_g1(A, cfg, 80, 81)
    A("g1_skip:\ns_waitcnt lgkmcnt(0)")
    ts_end(A, cfg, 1, 2); A("g1_end:\ns_endpgm"); A.end("g1_kernel", nv); A.launch("g1_kernel", 256, 256, 81920)
    A.begin("kc_kernel"); A("s_cmp_ge_u32 s2, 256\ns_cbranch_scc1 kc_end"); ts_begin(A, cfg); load_ptrs(A)
    A("v_and_b32 v1, 63, v0"); wave_id(A, 70, 2); A("s_waitcnt lgkmcnt(0)")
    role_k_issue(A, cfg, 2, 70); role_u_issue(A, cfg, 2, 70); role_k_pre(A, cfg, 70); role_k_tables(A, cfg, 70, 2)
    role_k_mfma(A, cfg, 70); role_k_expand(A, cfg, 70); role_u_store(A, cfg, 0); nv = role_conv(A, cfg, 2, 70)
    ts_end(A, cfg, 2, 2); A("kc_end:\ns_endpgm"); A.end("kc_kernel", nv); A.launch("kc_kernel", 256, 256, SSM_LDS)
    A.begin("g2_kernel"); A("s_cmp_ge_u32 s2, 256\ns_cbranch_scc1 g2_end"); ts_begin(A, cfg); load_ptrs(A)
    A("s_and_b32 s80, s2, 7\ns_lshr_b32 s81, s2, 3\ns_lshl_b32 s80, s80, 2\ns_lshr_b32 s82, s81, 3\ns_add_u32 s80, s80, s82\ns_and_b32 s81, s81, 7\ns_waitcnt lgkmcnt(0)")
    nv = role_g2(A, cfg, 80, 81)
    ts_end(A, cfg, 3, 2); A("g2_end:\ns_endpgm"); A.end("g2_kernel", nv); A.launch("g2_kernel", 256, 256, 49152)
    if cfg.get("empties"):
        A.begin("e_kernel"); A("s_endpgm"); A.end("e_kernel", 8)
        for i in range(cfg["empties"]): A.launch("e_kernel", 256, 256, 0)
    if cfg.get("dup"):
        A.launches = [l for l in A.launches for _ in range(2 if cfg["dup"] in l else 1)]
    return A.text(HEADER)

if __name__ == "__main__":
    mode = sys.argv[1]; out = sys.argv[2]
    cfg = {}
    for kv in sys.argv[3:]:
        k, v = kv.split("=")
        cfg[k] = int(v) if v.lstrip("-").isdigit() else v
    open(out, "w").write(globals()["build_" + mode](cfg))
```
